```python
import torch

def _softmax(x, axis=-1):
    return torch.softmax(x, dim=axis)
def _gelu(x):
    return torch.nn.functional.gelu(x, approximate="tanh")
def _silu(x):
    return torch.nn.functional.silu(x)
def _sigmoid(x):
    return torch.sigmoid(x)
def _layernorm(x, axis=-1, eps=1e-5):
    m = x.mean(dim=axis, keepdim=True)
    v = x.var(dim=axis, keepdim=True, unbiased=False)
    return (x - m) / torch.sqrt(v + eps)
def _scatter_add(tgt, idx, src, axis=0):
    return tgt.clone().index_add_(axis, idx, src)
def _segment_sum(src, seg, n):
    out = torch.zeros((n,) + src.shape[1:], dtype=src.dtype)
    return out.index_add_(0, seg, src)
def _pad(x, pw):
    flat = tuple(v for pair in reversed(pw) for v in pair)
    return torch.nn.functional.pad(x, flat)

kernel_name = 'sequential_preLN__linear_kernel_hedgehog__moe_arch_mod__prompt'

def setup_inputs():

    _w = (lambda a: (lambda t: t.to(torch.bfloat16) if t.is_floating_point() else t)(torch.as_tensor(a)))
    def _A_setup():
        B, S, D, H = 1, 2048, 576, 32
        Dh = D // H
        return {
            "x": _w((lambda *s: torch.randn(*s, dtype=torch.bfloat16) * 0.05)(B, S, D)),
            "wqkv": _w((lambda *s: torch.randn(*s, dtype=torch.bfloat16) * 0.2)(D, 3 * D)),
            "w_phi": _w((lambda *s: torch.randn(*s, dtype=torch.bfloat16) * 0.2)(H, Dh, Dh) * (Dh ** -0.5)),
            "wo": _w((lambda *s: torch.randn(*s, dtype=torch.bfloat16) * 0.05)(D, D)),
        }
    _A_in = _A_setup()

    def _B_setup():
        B, S, D, F, C = 1, 2048, 576, 4608, 8
        return {
            "x": _w((lambda *s: torch.randn(*s, dtype=torch.bfloat16) * 0.05)(B, S, D)),
            "w_r": _w((lambda *s: torch.randn(*s, dtype=torch.bfloat16) * 0.05)(D)),
            "w_gate": _w((lambda *s: torch.randn(*s, dtype=torch.bfloat16) * 0.05)(D, F)),
            "w_up": _w((lambda *s: torch.randn(*s, dtype=torch.bfloat16) * 0.05)(D, F)),
            "w_down": _w((lambda *s: torch.randn(*s, dtype=torch.bfloat16) * 0.05)(F, D)),
        }
    _B_in = _B_setup()

    return {
        "A_x": _A_in["x"],
        "A_wqkv": _A_in["wqkv"],
        "A_w_phi": _A_in["w_phi"],
        "A_wo": _A_in["wo"],
        "B_x": _B_in["x"],
        "B_w_r": _B_in["w_r"],
        "B_w_gate": _B_in["w_gate"],
        "B_w_up": _B_in["w_up"],
        "B_w_down": _B_in["w_down"],
    }

def reference(A_x, A_wqkv, A_w_phi, A_wo, B_x, B_w_r, B_w_gate, B_w_up, B_w_down):
    def _A_ref(x, wqkv, w_phi, wo):
        B, S, D = x.shape
        H = 32; Dh = D // H
        qkv = (lambda x, *d: x.permute(*d))((x @ wqkv).reshape(B, S, 3, H, Dh), 2, 0, 3, 1, 4)
        q, k, v = qkv[0], qkv[1], qkv[2]
        pq = torch.einsum("bhsd,hdf->bhsf", q, w_phi)
        pk = torch.einsum("bhsd,hdf->bhsf", k, w_phi)
        phi_q = torch.concatenate([_softmax(pq, axis=-1), _softmax(-pq, axis=-1)], axis=-1)
        phi_k = torch.concatenate([_softmax(pk, axis=-1), _softmax(-pk, axis=-1)], axis=-1)
        kv = torch.einsum("bhsf,bhsd->bhfd", phi_k, v)
        z  = torch.einsum("bhsf->bhf", phi_k)
        num = torch.einsum("bhqf,bhfd->bhqd", phi_q, kv)
        den = torch.einsum("bhqf,bhf->bhq", phi_q, z)[..., None] + 1e-6
        o = num / den
        return (lambda x, *d: x.permute(*d))(o, 0, 2, 1, 3).reshape(B, S, D) @ wo

    def _B_ref(x, w_r, w_gate, w_up, w_down):
        B, S, D = x.shape
        C = 8
        r = x @ w_r
        idx = torch.argsort(-r, axis=-1)[:, :C]
        idx_e = (lambda x, n, axis: torch.repeat_interleave(x, n, dim=axis))(idx.reshape(B, C, 1), D, axis=2)
        x_sel = (lambda x, i, axis: torch.take_along_dim(x, i, dim=axis))(x, idx_e, axis=1)
        g = _silu(x_sel @ w_gate)
        u = x_sel @ w_up
        y = (g * u) @ w_down
        r_sel = _sigmoid((lambda x, i, axis: torch.take_along_dim(x, i, dim=axis))(r, idx, axis=1))
        y = y * r_sel.reshape(B, C, 1)
        b_off = (torch.arange(B) * S).reshape(B, 1)
        flat_idx = (idx + b_off).reshape(B * C)
        zero = (x * 0.0).reshape(B * S, D)
        upd = _scatter_add(zero, flat_idx, y.reshape(B * C, D), axis=0)
        return x + upd.reshape(B, S, D)

    x = A_x
    h = x + _A_ref(_layernorm(x, axis=-1), A_wqkv, A_w_phi, A_wo)
    h2 = h + _B_ref(_layernorm(h, axis=-1), B_w_r, B_w_gate, B_w_up, B_w_down)
    return h2
```

```python
import re
REG = re.compile(r'^(-|\|)?(v|s|a)(\d+)$|^(-)?(v|s|a)\[(\d+):(\d+)\]$')
def regs(tok):
    tok = tok.strip()
    for m in ("abs(", "neg("):
        if tok.startswith(m): tok = tok[len(m):-1]
    tok = tok.strip("|")
    if tok.startswith("-"): tok = tok[1:]
    if tok == "vcc": return {("s", "vcc")}
    if tok in ("vcc_lo", "vcc_hi"): return {("s", "vcc")}
    if tok in ("exec", "exec_lo", "exec_hi"): return {("s", "exec")}
    if tok == "m0": return {("s", "m0")}
    m = re.match(r'^([vsa])(\d+)$', tok)
    if m: return {(m.group(1), int(m.group(2)))}
    m = re.match(r'^([vsa])\[(\d+):(\d+)\]$', tok)
    if m: return {(m.group(1), i) for i in range(int(m.group(2)), int(m.group(3)) + 1)}
    return set()
TRANS = ("v_exp_f32", "v_log_f32", "v_rcp_f32", "v_rsq_f32", "v_sqrt_f32", "v_sin_f32", "v_cos_f32")
def parse(line):
    t = line.split(";")[0].strip()
    if not t or t.endswith(":") or t.startswith("."): return None
    parts = t.split(None, 1)
    op = parts[0]; rest = parts[1] if len(parts) > 1 else ""
    rest = re.sub(r'\b(op_sel|op_sel_hi|neg_lo|neg_hi):\[[^\]]*\]', '', rest).strip()
    ops = [o.strip() for o in rest.split(",")]
    last = ops[-1].split() if ops and ops[-1] else []
    if last: ops[-1] = last[0]; mods = last[1:]
    else: mods = []; ops = ops[:-1] if ops else []
    d = dict(op=op, ops=ops, mods=mods, w=set(), r=set())
    R = [regs(o) for o in ops]
    allr = lambda xs: set().union(*xs) if xs else set()
    isv = op.startswith("v_")
    if op.startswith("v_mfma"):
        d["cls"] = "mfma"; d["w"] = R[0]; d["rA"] = R[1] | R[2]; d["rC"] = R[3]; d["r"] = allr(R[1:])
        d["passes"] = 8 if "32x32" in op or op == "v_mfma_f32_16x16x4_f32" else 4
        d["sgemm"] = op.endswith("_f32") and "x4_f32" in op
    elif op.startswith("v_cmp"):
        d["cls"] = "valu"; d["w"] = R[0]; d["r"] = allr(R[1:])
    elif op in ("v_readfirstlane_b32", "v_readlane_b32"):
        d["cls"] = "valu"; d["w"] = R[0]; d["r"] = allr(R[1:]); d["rl"] = True
    elif op.startswith("v_permlane"):
        d["cls"] = "valu"; d["w"] = R[0] | R[1]; d["r"] = R[0] | R[1]; d["perm"] = True
    elif isv:
        d["cls"] = "valu"; d["w"] = R[0]; d["r"] = allr(R[1:])
        if "_co_" in op: d["w"] = R[0] | R[1]; d["r"] = allr(R[2:])
        if op.startswith("v_cndmask") and len(ops) == 3: d["r"] |= {("s", "vcc")}
        if op.startswith("v_cndmask") and len(ops) == 4: pass
        if op.startswith(("v_fmac", "v_dot2c", "v_writelane")): d["r"] |= R[0]
        if "dpp" in op or any(m.startswith(("row_", "quad_perm")) for m in mods): d["dpp"] = True; d["r"] |= R[0]
        if op.replace("_e32", "").replace("_e64", "") in TRANS: d["trans"] = True
    elif op.startswith(("buffer_store", "global_store")):
        d["cls"] = "vmem"; d["r"] = allr(R); d["store"] = True
        n = 4 if "x4" in op else 3 if "x3" in op else 0
        d["wide"] = (R[0] if op.startswith("buffer") else R[1]) if n else set()
    elif op.startswith(("buffer_atomic", "global_atomic")):
        d["cls"] = "vmem"; d["r"] = allr(R)
    elif op.startswith(("buffer_load", "global_load")):
        d["cls"] = "vmem"
        if "lds" in mods or "lds" in op: d["r"] = allr(R) | {("s", "m0")}; d["dma"] = True
        else: d["w"] = R[0]; d["r"] = allr(R[1:])
    elif op.startswith("ds_"):
        d["cls"] = "ds"
        if op.startswith(("ds_read", "ds_bpermute", "ds_permute", "ds_swizzle")) or "rtn" in op: d["w"] = R[0]; d["r"] = allr(R[1:])
        else: d["r"] = allr(R)
    elif op.startswith("s_"):
        d["cls"] = "salu"
        if op.startswith(("s_cmp", "s_cbranch", "s_branch", "s_waitcnt", "s_barrier", "s_nop", "s_endpgm", "s_sleep", "s_setprio", "s_bitcmp")): d["r"] = allr(R)
        else: d["w"] = R[0] if R else set(); d["r"] = allr(R[1:])
        if "saveexec" in op: d["w"] |= {("s", "exec")}
        if op == "s_nop": d["ws"] = int(ops[0]) + 1
    else:
        d["cls"] = "other"
    return d
def vg(x): return {r for r in x if r[0] in "va"}
def sg(x): return {r for r in x if r[0] == "s"}
def need(p, c):
    n = 0
    pc, cc = p["cls"], c["cls"]
    if pc == "valu":
        pw_s = sg(p["w"]); pw_v = vg(p["w"])
        if pw_s:
            if cc == "valu" and (pw_s & c["r"]): n = max(n, 4 if c.get("rl") or c["op"].startswith("v_writelane") else 2)
            if cc == "vmem" and (pw_s & c["r"]): n = max(n, 5)
            if cc == "salu" and (pw_s & c["r"]): n = max(n, 1)
            if cc == "mfma" and ("s", "exec") in pw_s: n = max(n, 4)
        if pw_v:
            if c.get("rl") and (pw_v & c["r"]): n = max(n, 1)
            if c.get("perm") and (pw_v & c["r"]): n = max(n, 2)
            if c.get("dpp") and (pw_v & c["r"]): n = max(n, 2)
            if cc == "mfma" and (pw_v & c["r"]): n = max(n, 2)
            if p.get("trans") and cc in ("valu", "mfma") and (pw_v & c["r"]) : n = max(n, 1)
            if p["op"].startswith("v_dot") and c["op"] != p["op"] and (pw_v & (c["r"] | c["w"])): n = max(n, 3)
    if pc == "mfma":
        k = {4: 8, 8: 12}[p["passes"]]
        if p.get("sgemm"): k = {4: 6, 8: 10}[p["passes"]]
        if cc == "mfma":
            if p["w"] & c["rA"]: n = max(n, k)
            if p["w"] & c["rC"] and (p["w"] != c["rC"] or p["op"] != c["op"]): n = max(n, k - 2)
            if p["w"] & c["w"] and p["w"] != c["rC"]: n = max(n, k)
        elif cc in ("valu", "ds", "vmem") and (p["w"] & (c["r"] | c["w"])): n = max(n, k)
        if cc == "valu" and (p["rC"] & c["w"]): n = max(n, {4: 3, 8: 7}[p["passes"]])
    if pc == "salu" and ("s", "m0") in p["w"] and c.get("dma"): n = max(n, 1)
    if pc == "vmem" and p.get("wide") and cc in ("valu", "mfma", "ds", "vmem") and (p["wide"] & c["w"]): n = max(n, 2)
    return n
def fix(lines):
    out = []; hist = []; ins = 0
    for ln in lines:
        d = parse(ln)
        if d is None:
            out.append(ln); continue
        dist = 0; req = 0
        for p in reversed(hist):
            k = need(p, d)
            if k > dist: req = max(req, k - dist)
            dist += p.get("ws", 1)
            if dist >= 20: break
        if req > 0:
            out.append(f"  s_nop {req-1}"); hist.append(dict(cls="salu", op="s_nop", w=set(), r=set(), ws=req)); ins += 1
        out.append(ln); hist.append(d)
        if len(hist) > 40: hist = hist[-40:]
    return out, ins
```

```python
from gen import *
WOS = 0
OIM = 98304
ACC9 = 135168
ST2 = 137472
OUTB = 139264
AW = lambda s: 120 + 4*s
A9 = lambda i: 192 + 4*i

def rowsum64(g, v, t):
    for k in (8, 4, 2, 1):
        g.e(f"v_add_f32_dpp v{v}, v{v}, v{v} row_ror:{k} row_mask:0xf bank_mask:0xf")
    g.e(f"v_mov_b32 v{t}, v{v}"); g.e(f"v_permlane16_swap_b32 v{v}, v{t}"); g.e(f"v_add_f32 v{v}, v{v}, v{t}")
    g.e(f"v_mov_b32 v{t}, v{v}"); g.e(f"v_permlane32_swap_b32 v{v}, v{t}"); g.e(f"v_add_f32 v{v}, v{v}, v{t}")

def wo_voffsets(g):
    for which, (vn, vl) in enumerate(((14, 15), (16, 17))):
        if which == 0: g.e(f"s_lshl_b32 s{sT0}, s{sWAVE}, 6"); g.e(f"v_add_u32 v12, s{sT0}, v{vLANE}")
        else: g.e(f"v_add_u32 v12, 512, v{vLANE}")
        g.e(f"v_mul_u32_u24 v13, 3641, v12"); g.e(f"v_lshrrev_b32 v13, 16, v13")
        g.e(f"v_mul_u32_u24 v18, 18, v13"); g.e(f"v_sub_u32 v18, v12, v18")
        g.e(f"v_lshlrev_b32 v18, 4, v18"); g.e(f"s_mul_i32 s{sT0}, s{sCG}, 288"); g.e(f"v_add_u32 v18, s{sT0}, v18")
        g.e(f"v_and_b32 v19, 0x13, v13"); g.e(f"v_and_b32 v20, 4, v13"); g.e(f"v_lshlrev_b32 v20, 1, v20"); g.e(f"v_or_b32 v19, v19, v20")
        g.e(f"v_and_b32 v20, 8, v13"); g.e(f"v_lshrrev_b32 v20, 1, v20"); g.e(f"v_or_b32 v19, v19, v20")
        g.e(f"v_mul_u32_u24 v{vn}, 1152, v19"); g.e(f"v_add_u32 v{vn}, v{vn}, v18")
        g.e(f"v_lshrrev_b32 v19, 4, v13"); g.e(f"v_lshlrev_b32 v19, 2, v19")
        g.e(f"v_bfe_u32 v20, v13, 2, 1"); g.e(f"v_lshl_add_u32 v19, v20, 1, v19")
        g.e(f"v_bfe_u32 v20, v13, 3, 1"); g.e(f"v_add_u32 v19, v19, v20")
        g.e(f"v_mul_u32_u24 v19, 36, v19"); g.e(f"v_and_b32 v20, 3, v13"); g.e(f"v_add3_u32 v19, v19, v20, 32")
        g.e(f"v_mul_u32_u24 v{vl}, 1152, v19"); g.e(f"v_add_u32 v{vl}, v{vl}, v18")

def wo_dma_round(g, s0, ns, base):
    for s in range(s0, s0+ns):
        left = s >= 16
        soff = (s-16)*8*36*1152 if left else s*36*1152
        g.e(f"s_lshl_b32 s{sT1}, s{sWAVE}, 10"); g.e(f"s_add_u32 m0, s{sT1}, {base + (s-s0)*9216}")
        g.e(f"s_mov_b32 s{sT0}, {soff}")
        g.e(f"buffer_load_dwordx4 v{15 if left else 14}, {sr(sWO,4)}, s{sT0} offen lds")
        L = g.uid("w8"); g.e(f"s_cmp_eq_u32 s{sWAVE}, {s & 7}"); g.e(f"s_cbranch_scc0 {L}")
        g.e(f"s_mov_b32 m0, {base + (s-s0)*9216 + 8192}"); g.e("s_nop 0")
        g.e(f"buffer_load_dwordx4 v{17 if left else 16}, {sr(sWO,4)}, s{sT0} offen lds")
        g.lab(L)

def wo_read_round(g, s0, ns, base, vb):
    g.e(f"v_add_u32 v28, 64512, v{vb}"); g.e(f"v_add_u32 v29, 64512, v{vb+1}")
    def ad(sl, which):
        return (vb + which, sl*9216) if sl < 7 else (28 + which, (sl-7)*9216)
    for s in range(s0, s0+ns):
        a, o = ad(s - s0, 0)
        for h in range(2):
            g.e(f"ds_read_b64_tr_b16 {vr(AW(s)+2*h,2)}, v{a} offset:{o + h*2304}")
        if (s - s0) % 3 == 2: g.e("s_waitcnt lgkmcnt(6)")
    for s in range(s0, s0+ns):
        L = g.uid("r9"); g.e(f"s_cmp_eq_u32 s{sWAVE}, {s & 7}"); g.e(f"s_cbranch_scc0 {L}")
        a, o = ad(s - s0, 1)
        for h in range(2):
            g.e(f"ds_read_b64_tr_b16 {vr(A9(s >> 3)+2*h,2)}, v{a} offset:{o + h*2304}")
        g.lab(L)

def phase_B2(g, opts):
    stop = opts.get("stop", "")
    g.lab("L_B2")
    g.e("s_waitcnt vmcnt(0) lgkmcnt(0)"); g.e("s_barrier")
    wo_voffsets(g)
    g.e(f"v_mul_u32_u24 v18, 288, v75"); g.e(f"v_and_b32 v12, 3, v{vLANE}"); g.e(f"v_lshl_add_u32 v18, v12, 3, v18")
    g.e(f"v_add_u32 v19, {WOS + 256}, v18"); g.e(f"s_lshl_b32 s{sT0}, s{sWAVE}, 5"); g.e(f"s_add_u32 s{sT0}, s{sT0}, {WOS}"); g.e(f"v_add_u32 v18, s{sT0}, v18")
    g.e(f"s_lshl_b32 s{sT0}, s{sTG}, 5"); g.e(f"v_add_u32 v12, s{sT0}, v{vN}"); g.e(f"v_mul_u32_u24 v12, 1152, v12")
    g.e(f"s_mul_i32 s{sT1}, s{sCG}, 288"); g.e(f"s_lshl_b32 s{sT2}, s{sWAVE}, 5"); g.e(f"s_add_u32 s{sT2}, s{sT2}, s{sT1}")
    g.e(f"v_lshl_add_u32 v13, v{vGQ}, 3, s{sT2}")
    g.e(f"v_add_u32 v20, v12, v13")
    g.e(f"buffer_load_dwordx2 v[204:205], v20, {sr(sX,4)}, 0 offen"); g.e(f"s_mov_b32 s{sT0}, 18432")
    g.e(f"buffer_load_dwordx2 v[206:207], v20, {sr(sX,4)}, s{sT0} offen")
    g.e(f"buffer_load_dwordx2 v[208:209], v13, {sr(sWR,4)}, 0 offen")
    g.e(f"s_lshr_b32 s{sT2}, s{sWAVE}, 1"); g.e(f"s_lshl_b32 s{sT2}, s{sT2}, 1"); g.e(f"s_add_u32 s{sT2}, s{sT2}, s{sT1}"); g.e(f"s_add_u32 s{sT2}, s{sT2}, 256")
    g.e(f"v_lshl_add_u32 v13, v{vGQ}, 3, s{sT2}")
    g.e(f"s_and_b32 s{sT3}, s{sWAVE}, 1"); g.e(f"s_mul_i32 s{sT3}, s{sT3}, 18432"); g.e(f"v_add_u32 v20, v12, v13")
    g.e(f"buffer_load_ushort v210, v20, {sr(sX,4)}, s{sT3} offen")
    g.e(f"buffer_load_ushort v211, v13, {sr(sWR,4)}, 0 offen")
    g.e(f"v_lshlrev_b32 v12, 4, v{vLANE}")
    g.e(f"buffer_load_dwordx4 v[212:215], v12, {sr(sWR,4)}, 0 offen"); g.e(f"buffer_load_dwordx4 v[216:219], v12, {sr(sWR,4)}, 0 offen offset:1024")
    g.e(f"v_mov_b32 v24, 0"); g.e(f"v_mov_b32 v25, 0"); g.e(f"v_mov_b32 v26, 0"); g.e(f"v_mov_b32 v27, 0")
    g.e(f"v_lshlrev_b32 v12, 4, v{vTID}"); g.e(f"v_add_u32 v12, {ACC9}, v12"); g.e(f"v_cmp_gt_u32 vcc, 176, v{vTID}")
    g.e(f"s_and_saveexec_b64 {sr(sEX,2)}, vcc"); L = g.uid("z9"); g.e(f"s_cbranch_execz {L}")
    g.e(f"ds_write_b128 v12, v[24:27]"); g.lab(L); g.e(f"s_mov_b64 exec, {sr(sEX,2)}")
    for (s0, ns) in ((0, 9), (9, 9)):
        wo_dma_round(g, s0, ns, WOS)
        g.e("s_waitcnt vmcnt(0)"); g.e("s_barrier")
        wo_read_round(g, s0, ns, WOS, 18)
        g.e("s_waitcnt lgkmcnt(0)"); g.e("s_barrier")
    g.e("v_mov_b32 v220, 0")
    for r in range(8): g.e(f"v_dot2c_f32_bf16 v220, v{212+r}, v{vONES}")
    rowsum64(g, 220, 221)
    g.e(f"s_mul_i32 s{sT1}, s{sTG}, 36864"); g.e(f"s_add_u32 s{sT1}, s{sT1}, {OWS}")
    g.e(f"v_lshlrev_b32 v12, 4, v{vLANE}")
    L, Ld = g.uid("og"), g.uid("ogd")
    g.e(f"s_mov_b32 s{sCNT}, 0")
    g.lab(L)
    for t in range(5):
        g.e(f"s_add_u32 s{sT2}, s{sWAVE}, {8*t}"); g.e(f"s_min_u32 s{sT2}, s{sT2}, 35"); g.e(f"s_lshl_b32 s{sT2}, s{sT2}, 10"); g.e(f"s_add_u32 s{sT2}, s{sT2}, s{sT1}")
        g.e(f"buffer_load_dwordx4 {vr(76+4*t,4)}, v12, {sr(sWS,4)}, s{sT2} offen sc1")
    g.e(f"s_add_u32 s{sCNT}, s{sCNT}, 1"); g.e("s_waitcnt vmcnt(0)")
    g.e("v_max3_u32 v13, v76, v77, v78")
    for k in range(79, 95, 2): g.e(f"v_max3_u32 v13, v13, v{k}, v{k+1}")
    g.e("v_max_u32 v13, v13, v95"); g.e("v_cmp_eq_u32 vcc, -1, v13")
    g.e(f"s_cmp_gt_u32 s{sCNT}, {SPIN//4}"); g.e(f"s_cbranch_scc1 {Ld}"); g.e(f"s_cbranch_vccnz {L}")
    g.lab(Ld)
    for t in range(5):
        g.e(f"s_add_u32 s{sT2}, s{sWAVE}, {8*t}"); g.e(f"s_min_u32 s{sT2}, s{sT2}, 35"); g.e(f"s_lshl_b32 s{sT2}, s{sT2}, 10"); g.e(f"s_add_u32 s{sT2}, s{sT2}, {OIM}")
        g.e(f"v_add_u32 v13, s{sT2}, v12"); g.e(f"ds_write_b128 v13, {vr(76+4*t,4)}")
    g.e("s_waitcnt lgkmcnt(0)"); g.e("s_barrier")
    vB, vBL = 21, 22
    g.e(f"v_add_u32 v{vB}, {OIM}, v12")
    g.e(f"v_lshlrev_b32 v{vBL}, 8, v{vGQ}"); g.e(f"v_lshl_add_u32 v{vBL}, v{vN}, 3, v{vBL}"); g.e(f"v_add_u32 v{vBL}, {OIM + 16384}, v{vBL}")
    BB = lambda b, tt: 76 + 8*b + 4*tt
    def breads(s, b, base=vB, basel=vBL, dyn=False):
        for tt in range(2):
            if s < 16: g.e(f"ds_read_b128 {vr(BB(b,tt),4)}, v{base} offset:{tt*18432 + (0 if dyn else s*1024)}")
            else:
                u = 0 if dyn else s - 16
                g.e(f"ds_read_b64 {vr(BB(b,tt),2)}, v{basel} offset:{tt*18432 + u*1024}")
                g.e(f"ds_read_b64 {vr(BB(b,tt)+2,2)}, v{basel} offset:{tt*18432 + u*1024 + 128}")
    D9 = lambda tt: 100 + 4*tt
    DM = lambda tt: 108 + 4*tt
    g.e(f"s_lshl_b32 s{sT0}, s{sWAVE}, 10"); g.e(f"v_add_u32 v23, s{sT0}, v{vB}")
    breads(0, 0, base=23, dyn=True); g.e("v_add_u32 v23, 8192, v23"); breads(0, 1, base=23, dyn=True)
    g.e("s_waitcnt lgkmcnt(2)")
    for tt in range(2): mfma32(g, D9(tt), A9(0), BB(0,tt), None)
    g.e("s_waitcnt lgkmcnt(0)")
    for tt in range(2): mfma32(g, D9(tt), A9(1), BB(1,tt), D9(tt))
    L = g.uid("n9"); g.e(f"s_cmp_lt_u32 s{sWAVE}, 2"); g.e(f"s_cbranch_scc0 {L}")
    g.e(f"v_add_u32 v23, s{sT0}, v{vBL}"); g.e("s_nop 7")
    breads(16, 0, basel=23, dyn=True); g.e("s_waitcnt lgkmcnt(0)")
    for tt in range(2): mfma32(g, D9(tt), A9(2), BB(0,tt), D9(tt))
    g.lab(L)
    g.e(f"v_mul_u32_u24 v23, 68, v{vN}"); g.e(f"v_lshl_add_u32 v23, v{vGQ}, 4, v23"); g.e(f"v_add_u32 v23, {ACC9}, v23")
    g.e("s_nop 7")
    breads(0, 0)
    for tt in range(2):
        for r in range(4): g.e(f"ds_add_f32 v23, v{D9(tt)+r} offset:{tt*16*68 + 4*r}")
    g.e("s_waitcnt lgkmcnt(0)")
    for s in range(18):
        if s < 17:
            breads(s+1, (s+1) & 1); g.e(f"s_waitcnt lgkmcnt({2 if s+1 < 16 else 4})")
        else: g.e("s_waitcnt lgkmcnt(0)")
        for tt in range(2): mfma32(g, DM(tt), AW(s), BB(s & 1, tt), None if s == 0 else DM(tt))
    g.e("s_waitcnt lgkmcnt(0)"); g.e("s_barrier")
    g.e(f"s_and_b32 s{sT0}, s{sWAVE}, 1"); g.e(f"s_mul_i32 s{sT0}, s{sT0}, {16*68}"); g.e(f"s_lshr_b32 s{sT1}, s{sWAVE}, 1"); g.e(f"s_lshl_b32 s{sT1}, s{sT1}, 2"); g.e(f"s_add_u32 s{sT0}, s{sT0}, s{sT1}")
    g.e(f"v_add_u32 v23, s{sT0}, v23"); g.e(f"ds_read_b32 v116, v23")
    for tt in range(2):
        for p in range(2):
            x = 204 + 2*tt + p
            g.e(f"v_lshlrev_b32 v12, 16, v{x}"); g.e(f"v_and_b32 v13, 0xffff0000, v{x}")
            g.e(f"v_add_f32 v{DM(tt)+2*p}, v{DM(tt)+2*p}, v12"); g.e(f"v_add_f32 v{DM(tt)+2*p+1}, v{DM(tt)+2*p+1}, v13")
    for p in range(2):
        g.e(f"v_lshlrev_b32 v{84+2*p}, 16, v{208+p}"); g.e(f"v_and_b32 v{85+2*p}, 0xffff0000, v{208+p}")
    g.e("v_lshlrev_b32 v88, 16, v211"); g.e("v_lshlrev_b32 v12, 16, v210")
    g.e("s_waitcnt lgkmcnt(0)"); g.e("v_add_f32 v116, v116, v12")
    for tt in range(2):
        h = DM(tt); s1, s2, s3 = 90+3*tt, 91+3*tt, 92+3*tt
        g.e(f"v_add_f32 v{s1}, v{h}, v{h+1}"); g.e(f"v_mul_f32 v{s2}, v{h}, v{h}"); g.e(f"v_mul_f32 v{s3}, v{h}, v84")
        g.e(f"v_add_f32 v{s1}, v{s1}, v{h+2}"); g.e(f"v_fmac_f32 v{s2}, v{h+1}, v{h+1}"); g.e(f"v_fmac_f32 v{s3}, v{h+1}, v85")
        g.e(f"v_add_f32 v{s1}, v{s1}, v{h+3}"); g.e(f"v_fmac_f32 v{s2}, v{h+2}, v{h+2}"); g.e(f"v_fmac_f32 v{s3}, v{h+2}, v86")
        g.e(f"v_fmac_f32 v{s2}, v{h+3}, v{h+3}"); g.e(f"v_fmac_f32 v{s3}, v{h+3}, v87")
    g.e(f"s_and_b32 s{sT0}, s{sWAVE}, 1"); g.e(f"s_cmp_eq_u32 s{sT0}, 0"); g.e(f"s_cselect_b32 s{sT1}, 1.0, 0"); g.e(f"s_cselect_b32 s{sT2}, 0, 1.0")
    for tt, sel in ((0, sT1), (1, sT2)):
        g.e(f"v_mul_f32 v12, s{sel}, v116")
        g.e(f"v_add_f32 v{90+3*tt}, v{90+3*tt}, v12"); g.e(f"v_fmac_f32 v{91+3*tt}, v12, v116"); g.e(f"v_fmac_f32 v{92+3*tt}, v12, v88")
    g.e("v_mov_b32 v96, 0"); g.e("v_mov_b32 v97, 0")
    for (a, b) in ((90, 91), (92, 96), (93, 94), (95, 97)):
        g.e(f"v_permlane16_swap_b32 v{a}, v{b}"); g.e(f"v_add_f32 v{a}, v{a}, v{b}")
    for (a, b) in ((90, 92), (93, 95)):
        g.e(f"v_permlane32_swap_b32 v{a}, v{b}"); g.e(f"v_add_f32 v{a}, v{a}, v{b}")
    g.e(f"v_lshlrev_b32 v12, 4, v{vN}"); g.e(f"v_lshl_add_u32 v12, v{vGQ}, 2, v12"); g.e(f"v_add_u32 v12, {ST2}, v12")
    g.e("ds_add_f32 v12, v90"); g.e("ds_add_f32 v12, v93 offset:256")
    g.e("s_waitcnt lgkmcnt(0)"); g.e("s_barrier")
    g.e(f"s_lshl_b32 s{sT1}, s{sTG}, 11"); g.e(f"s_add_u32 s{sT1}, s{sT1}, {STP}")
    g.e(f"v_and_b32 v12, 31, v{vLANE}"); g.e(f"v_lshlrev_b32 v12, 4, v12")
    L = g.uid("sp"); g.e(f"s_cmp_eq_u32 s{sWAVE}, 0"); g.e(f"s_cbranch_scc0 {L}")
    g.e(f"v_add_u32 v13, {ST2}, v12"); g.e("ds_read_b128 v[76:79], v13"); g.e(f"s_lshl_b32 s{sT2}, s{sCG}, 9"); g.e(f"s_add_u32 s{sT2}, s{sT2}, s{sT1}")
    g.e("s_mov_b32 exec_hi, 0"); g.e("s_waitcnt lgkmcnt(0)")
    g.e(f"buffer_store_dwordx4 v[76:79], v12, {sr(sWS,4)}, s{sT2} offen sc1"); g.e("s_mov_b32 exec_hi, -1")
    g.lab(L)
    L, Ld = g.uid("sg"), g.uid("sgd")
    g.e(f"s_mov_b32 s{sCNT}, 0")
    g.lab(L)
    for c in range(4): g.e(f"buffer_load_dwordx4 {vr(76+4*c,4)}, v12, {sr(sWS,4)}, s{sT1} offen offset:{512*c} sc1")
    g.e(f"s_add_u32 s{sCNT}, s{sCNT}, 1"); g.e("s_waitcnt vmcnt(0)")
    g.e("v_max3_u32 v13, v76, v77, v78")
    for c in range(1, 4): g.e(f"v_max3_u32 v13, v13, v{76+4*c}, v{77+4*c}"); g.e(f"v_max_u32 v13, v13, v{78+4*c}")
    g.e("v_cmp_eq_u32 vcc, -1, v13")
    g.e(f"s_cmp_gt_u32 s{sCNT}, {SPIN//4}"); g.e(f"s_cbranch_scc1 {Ld}"); g.e(f"s_cbranch_vccnz {L}")
    g.lab(Ld)
    for q in range(3):
        g.e(f"v_add_f32 v{76+q}, v{76+q}, v{80+q}"); g.e(f"v_add_f32 v{84+q}, v{84+q}, v{88+q}"); g.e(f"v_add_f32 v{76+q}, v{76+q}, v{84+q}")
    g.e("v_mul_f32 v76, 0x3ae38e39, v76"); g.e("v_mul_f32 v77, 0x3ae38e39, v77"); g.e("v_fma_f32 v77, -v76, v76, v77"); g.e("v_max_f32 v77, 0, v77")
    g.e("v_add_f32 v77, 0x3727c5ac, v77"); g.e("v_rsq_f32 v77, v77")
    g.e("v_fma_f32 v78, -v76, v220, v78"); g.e("v_mul_f32 v78, v78, v77")
    g.e("v_add_f32 v79, 1.0, v77"); g.e("v_rcp_f32 v79, v79"); g.e("v_mul_f32 v80, v77, v79"); g.e("v_mul_f32 v81, v76, v80"); g.e("v_sub_f32 v81, 0, v81")
    L = g.uid("rp"); g.e(f"s_cmp_eq_u32 s{sWAVE}, 0"); g.e(f"s_cbranch_scc0 {L}")
    g.e(f"s_lshl_b32 s{sT1}, s{sTG}, 7"); g.e(f"s_add_u32 s{sT2}, s{sT1}, {RWS}"); g.e(f"v_and_b32 v12, 31, v{vLANE}"); g.e("v_lshlrev_b32 v13, 2, v12"); g.e("v_lshlrev_b32 v12, 3, v12")
    g.e("s_mov_b32 exec_hi, 0")
    g.e(f"buffer_store_dword v78, v13, {sr(sWS,4)}, s{sT2} offen sc1")
    g.e(f"s_lshl_b32 s{sT1}, s{sTG}, 8"); g.e(f"s_add_u32 s{sT2}, s{sT1}, {MRS}")
    g.e(f"buffer_store_dwordx2 v[80:81], v13, {sr(sWS,4)}, s{sT2} offen sc1") if False else g.e(f"buffer_store_dwordx2 v[80:81], v12, {sr(sWS,4)}, s{sT2} offen sc1")
    g.e("s_mov_b32 exec_hi, -1")
    g.lab(L)
    g.e("v_mov_b32 v82, v76"); g.e("v_mov_b32 v83, v77")
    g.e("v_permlane16_swap_b32 v76, v82"); g.e("v_permlane16_swap_b32 v77, v83")
    for tt, (mm, rr) in enumerate(((76, 77), (82, 83))):
        for r in range(4):
            h = DM(tt) + r
            g.e(f"v_sub_f32 v12, v{h}, v{mm}"); g.e(f"v_fma_f32 v{h}, v12, v{rr}, v{h}")
        g.e(f"v_cvt_pk_bf16_f32 v{84+2*tt}, v{DM(tt)}, v{DM(tt)+1}"); g.e(f"v_cvt_pk_bf16_f32 v{85+2*tt}, v{DM(tt)+2}, v{DM(tt)+3}")
    g.e(f"s_and_b32 s{sT0}, s{sWAVE}, 1"); g.e(f"s_cmp_eq_u32 s{sT0}, 0"); g.e("s_cselect_b64 vcc, -1, 0"); g.e("s_nop 1")
    g.e("v_cndmask_b32 v12, v82, v76, vcc"); g.e("v_cndmask_b32 v13, v83, v77, vcc")
    g.e("v_sub_f32 v12, v116, v12"); g.e("v_fma_f32 v116, v12, v13, v116"); g.e("v_cvt_pk_bf16_f32 v116, v116, v116")
    g.e(f"v_mul_u32_u24 v12, 288, v{vN}"); g.e(f"v_lshl_add_u32 v12, v{vGQ}, 3, v12"); g.e(f"v_add_u32 v12, {OUTB}, v12")
    g.e(f"s_lshl_b32 s{sT1}, s{sWAVE}, 5"); g.e(f"v_add_u32 v13, s{sT1}, v12")
    g.e("ds_write_b64 v13, v[84:85]"); g.e(f"ds_write_b64 v13, v[86:87] offset:{16*288}")
    g.e(f"s_mul_i32 s{sT0}, s{sT0}, {16*288}"); g.e(f"s_lshr_b32 s{sT1}, s{sWAVE}, 1"); g.e(f"s_lshl_b32 s{sT1}, s{sT1}, 1"); g.e(f"s_add_u32 s{sT0}, s{sT0}, s{sT1}"); g.e(f"s_add_u32 s{sT0}, s{sT0}, 256")
    g.e(f"v_add_u32 v13, s{sT0}, v12"); g.e("ds_write_b16 v13, v116")
    g.e("s_waitcnt lgkmcnt(0)"); g.e("s_barrier")
    for part in range(2):
        g.e(f"v_add_u32 v12, {64*part}, v{vLANE}")
        g.e(f"v_mul_u32_u24 v13, 3641, v12"); g.e("v_lshrrev_b32 v13, 16, v13")
        g.e("v_mul_u32_u24 v14, 18, v13"); g.e("v_sub_u32 v14, v12, v14")
        g.e(f"s_lshl_b32 s{sT0}, s{sWAVE}, 2"); g.e(f"v_add_u32 v13, s{sT0}, v13")
        g.e("v_mul_u32_u24 v15, 288, v13"); g.e("v_lshl_add_u32 v15, v14, 4, v15"); g.e(f"v_add_u32 v15, {OUTB}, v15")
        g.e(f"ds_read_b128 v[76:79], v15")
        g.e(f"s_lshl_b32 s{sT0}, s{sTG}, 5"); g.e(f"v_add_u32 v13, s{sT0}, v13"); g.e("v_mul_u32_u24 v13, 1152, v13"); g.e("v_lshl_add_u32 v13, v14, 4, v13")
        g.e(f"s_mul_i32 s{sT0}, s{sCG}, 288")
        if part == 1: g.e("s_mov_b32 exec_lo, 0xff"); g.e("s_mov_b32 exec_hi, 0")
        g.e("s_waitcnt lgkmcnt(0)")
        g.e(f"buffer_store_dwordx4 v[76:79], v13, {sr(sOUT,4)}, s{sT0} offen sc1")
        g.e("s_mov_b64 exec, -1"); g.e("s_nop 1")
    if stop == "B2":
        g.e("s_waitcnt vmcnt(0)"); g.e("s_branch L_exit"); return
```

```python
from gen import *
GIM, UIM = 0, 27648
XS = 55296
RED = 147456
TMX = MISC
SEL = MISC + 64
sSEL = 96
sF0, sCGD = 63, 63

def wave_max_u32(g, v, t):
    for k in (8, 4, 2, 1):
        g.e(f"v_max_u32_dpp v{v}, v{v}, v{v} row_ror:{k} row_mask:0xf bank_mask:0xf")
    g.e(f"v_mov_b32 v{t}, v{v}"); g.e(f"v_permlane16_swap_b32 v{v}, v{t}"); g.e(f"v_max_u32 v{v}, v{v}, v{t}")
    g.e(f"v_mov_b32 v{t}, v{v}"); g.e(f"v_permlane32_swap_b32 v{v}, v{t}"); g.e(f"v_max_u32 v{v}, v{v}, v{t}")

def top8(g):
    g.e(f"v_lshlrev_b32 v12, 2, v{vLANE}"); g.e(f"v_add_u32 v12, {TMX}, v12"); g.e("v_mov_b32 v13, 0")
    g.e("s_mov_b64 exec, 0xff"); g.e("ds_write_b32 v12, v13"); g.e("s_mov_b64 exec, -1")
    g.e(f"v_lshlrev_b32 v12, 4, v{vTID}")
    L, Ld = g.uid("rg"), g.uid("rgd")
    g.e(f"s_mov_b32 s{sCNT}, 0"); g.e(f"s_mov_b32 s{sT1}, {RWS}")
    g.lab(L)
    g.e(f"buffer_load_dwordx4 v[76:79], v12, {sr(sWS,4)}, s{sT1} offen sc1")
    g.e(f"s_add_u32 s{sCNT}, s{sCNT}, 1"); g.e("s_waitcnt vmcnt(0)")
    g.e("v_max3_u32 v13, v76, v77, v78"); g.e("v_max_u32 v13, v13, v79"); g.e("v_cmp_eq_u32 vcc, -1, v13")
    g.e(f"s_cmp_gt_u32 s{sCNT}, {SPIN//4}"); g.e(f"s_cbranch_scc1 {Ld}"); g.e(f"s_cbranch_vccnz {L}")
    g.lab(Ld)
    g.e(f"v_lshlrev_b32 v14, 2, v{vTID}"); g.e("v_sub_u32 v14, 2047, v14")
    for q in range(4):
        g.e(f"v_ashrrev_i32 v13, 31, v{76+q}"); g.e("v_or_b32 v13, 0x80000000, v13"); g.e(f"v_xor_b32 v{76+q}, v{76+q}, v13")
        g.e(f"v_and_b32 v{76+q}, 0xfffff800, v{76+q}"); g.e(f"v_subrev_u32 v13, {q}, v14"); g.e(f"v_or_b32 v{76+q}, v{76+q}, v13")
    g.e("s_waitcnt lgkmcnt(0)"); g.e("s_barrier")
    g.e(f"v_mov_b32 v80, -1")
    g.e(f"v_mov_b32 v15, {TMX}")
    for rnd in range(8):
        for q in range(4):
            g.e(f"v_cmp_lt_u32 vcc, v{76+q}, v80"); g.e("s_nop 1"); g.e(f"v_cndmask_b32 v{82+q}, 0, v{76+q}, vcc")
        g.e("v_max3_u32 v81, v82, v83, v84"); g.e("v_max_u32 v81, v81, v85")
        wave_max_u32(g, 81, 86)
        g.e("s_mov_b64 exec, 1"); g.e(f"ds_max_u32 v15, v81 offset:{4*rnd}"); g.e("s_mov_b64 exec, -1")
        g.e("s_waitcnt lgkmcnt(0)"); g.e("s_barrier")
        g.e(f"ds_read_b32 v80, v15 offset:{4*rnd}"); g.e("s_waitcnt lgkmcnt(0)")
    g.e(f"v_lshlrev_b32 v12, 2, v{vLANE}"); g.e(f"v_and_b32 v12, 31, v12"); g.e(f"v_add_u32 v13, {TMX}, v12")
    g.e("ds_read_b32 v87, v13"); g.e("s_waitcnt lgkmcnt(0)")
    g.e("v_and_b32 v87, 0x7ff, v87"); g.e("v_sub_u32 v87, 2047, v87")

def phase_CD(g, opts):
    g.e("s_waitcnt lgkmcnt(0)"); g.e("s_barrier")
    g.e(f"s_cmp_ge_u32 s{sJ}, 24"); g.e("s_cbranch_scc1 L_D")
    g.e(f"s_mul_i32 s{sF0}, s{sXCD}, 576"); g.e(f"s_mul_i32 s{sT0}, s{sJ}, 24"); g.e(f"s_add_u32 s{sF0}, s{sF0}, s{sT0}")
    for p in range(3):
        g.e(f"v_add_u32 v12, {64*p}, v{vLANE}")
        g.e("v_mul_u32_u24 v13, 21846, v12"); g.e("v_lshrrev_b32 v13, 16, v13")
        g.e("v_mul_u32_u24 v14, 3, v13"); g.e("v_sub_u32 v14, v12, v14")
        g.e("v_and_b32 v15, 0xfffffff3, v13"); g.e("v_and_b32 v19, 4, v13"); g.e("v_lshlrev_b32 v19, 1, v19"); g.e("v_or_b32 v15, v15, v19")
        g.e("v_and_b32 v19, 8, v13"); g.e("v_lshrrev_b32 v19, 1, v19"); g.e("v_or_b32 v15, v15, v19")
        g.e("v_mul_u32_u24 v15, 9216, v15"); g.e("v_lshl_add_u32 v15, v14, 4, v15"); g.e(f"s_lshl_b32 s{sT0}, s{sF0}, 1"); g.e(f"v_add_u32 v{16+p}, s{sT0}, v15")
    for t in range(3):
        L, Lu, Le = g.uid("cd"), g.uid("cu"), g.uid("ce")
        g.e(f"s_add_u32 s{sT2}, s{sWAVE}, {8*t}"); g.e(f"s_cmp_ge_u32 s{sT2}, 18"); g.e(f"s_cbranch_scc1 {Le}")
        g.e(f"s_cmp_ge_u32 s{sT2}, 9"); g.e(f"s_cbranch_scc1 {Lu}")
        g.e(f"s_mul_i32 s{sT0}, s{sT2}, {64*9216}"); g.e(f"s_mul_i32 s{sT1}, s{sT2}, 3072")
        for p in range(3):
            g.e(f"s_add_u32 m0, s{sT1}, {GIM + 1024*p}"); g.e("s_nop 0"); g.e(f"buffer_load_dwordx4 v{16+p}, {sr(sG,4)}, s{sT0} offen lds")
        g.e(f"s_branch {Le}")
        g.lab(Lu)
        g.e(f"s_sub_u32 s{sT2}, s{sT2}, 9"); g.e(f"s_mul_i32 s{sT0}, s{sT2}, {64*9216}"); g.e(f"s_mul_i32 s{sT1}, s{sT2}, 3072")
        for p in range(3):
            g.e(f"s_add_u32 m0, s{sT1}, {UIM + 1024*p}"); g.e("s_nop 0"); g.e(f"buffer_load_dwordx4 v{16+p}, {sr(sU,4)}, s{sT0} offen lds")
        g.lab(Le)
    top8(g)
    g.e(f"v_readlane_b32 s{sT3}, v87, s{sWAVE}")
    g.e(f"s_mul_i32 s{sT1}, s{sT3}, 1152"); g.e(f"s_lshl_b32 s{sT2}, s{sT3}, 3"); g.e(f"s_add_u32 s{sT2}, s{sT2}, {MRS}")
    g.e(f"v_lshlrev_b32 v12, 4, v{vLANE}"); g.e("v_mov_b32 v13, 0")
    g.e(f"v_cmp_gt_u32 vcc, 8, v{vLANE}"); g.e("v_add_u32 v14, 1024, v12"); g.e("v_mov_b32 v15, 0"); g.e("v_cndmask_b32 v14, v15, v14, vcc")
    L, Ld = g.uid("xg"), g.uid("xgd")
    g.e(f"s_mov_b32 s{sCNT}, 0")
    g.lab(L)
    g.e(f"buffer_load_dwordx4 v[76:79], v12, {sr(sOUT,4)}, s{sT1} offen sc1")
    g.e(f"buffer_load_dwordx4 v[80:83], v14, {sr(sOUT,4)}, s{sT1} offen sc1")
    g.e(f"buffer_load_dwordx2 v[84:85], v13, {sr(sWS,4)}, s{sT2} offen sc1")
    g.e(f"s_add_u32 s{sCNT}, s{sCNT}, 1"); g.e("s_waitcnt vmcnt(0)")
    g.e("v_max3_u32 v15, v76, v77, v78"); g.e("v_max3_u32 v15, v15, v79, v80"); g.e("v_max3_u32 v15, v15, v81, v82"); g.e("v_max3_u32 v15, v15, v83, v84"); g.e("v_max_u32 v15, v15, v85")
    g.e("v_cmp_eq_u32 vcc, -1, v15")
    g.e(f"s_cmp_gt_u32 s{sCNT}, {SPIN//4}"); g.e(f"s_cbranch_scc1 {Ld}"); g.e(f"s_cbranch_vccnz {L}")
    g.lab(Ld)
    for k in range(8):
        g.e(f"v_lshlrev_b32 v13, 16, v{76+k}"); g.e(f"v_and_b32 v15, 0xffff0000, v{76+k}")
        g.e("v_fma_f32 v13, v13, v84, v85"); g.e("v_fma_f32 v15, v15, v84, v85"); g.e(f"v_cvt_pk_bf16_f32 v{76+k}, v13, v15")
    g.e(f"s_mul_i32 s{sT0}, s{sWAVE}, 1168"); g.e(f"s_add_u32 s{sT0}, s{sT0}, {XS}"); g.e(f"v_add_u32 v12, s{sT0}, v12")
    g.e("ds_write_b128 v12, v[76:79]")
    g.e("s_mov_b64 exec, 0xff"); g.e("ds_write_b128 v12, v[80:83] offset:1024"); g.e("s_mov_b64 exec, -1")
    g.e("s_waitcnt vmcnt(0) lgkmcnt(0)"); g.e("s_barrier")
    g.e(f"s_and_b32 s{sT0}, s{sWAVE}, 3"); g.e(f"s_lshr_b32 s{sT1}, s{sWAVE}, 2")
    g.e(f"s_lshr_b32 s{sT2}, s{sT0}, 1"); g.e(f"s_mul_i32 s{sT2}, s{sT2}, {UIM}"); g.e(f"s_and_b32 s{sT0}, s{sT0}, 1"); g.e(f"s_lshl_b32 s{sT0}, s{sT0}, 5"); g.e(f"s_add_u32 s{sT2}, s{sT2}, s{sT0}")
    g.e(f"s_mul_i32 s{sT0}, s{sT1}, {9*1536}"); g.e(f"s_add_u32 s{sT2}, s{sT2}, s{sT0}")
    g.e("v_mul_u32_u24 v12, 48, v75"); g.e(f"v_and_b32 v13, 3, v{vLANE}"); g.e("v_lshl_add_u32 v12, v13, 3, v12"); g.e(f"v_add_u32 v12, s{sT2}, v12")
    g.e(f"v_and_b32 v13, 7, v{vN}"); g.e("v_mul_u32_u24 v13, 1168, v13"); g.e(f"v_lshl_add_u32 v13, v{vGQ}, 4, v13"); g.e(f"s_mul_i32 s{sT0}, s{sT1}, {9*64}"); g.e(f"s_add_u32 s{sT0}, s{sT0}, {XS}"); g.e(f"v_add_u32 v13, s{sT0}, v13")
    for s in range(9):
        for h in range(2): g.e(f"ds_read_b64_tr_b16 {vr(76+8*s+2*h,2)}, v12 offset:{s*1536 + h*384}")
        g.e(f"ds_read_b128 {vr(80+8*s,4)}, v13 offset:{s*64}")
        if s % 3 == 2: g.e("s_waitcnt lgkmcnt(3)") if s < 8 else None
    g.e("s_waitcnt lgkmcnt(0)")
    for s in range(9): mfma32(g, 16, 76+8*s, 80+8*s, None if s == 0 else 16)
    g.e(f"s_lshl_b32 s{sT0}, s{sWAVE}, 10"); g.e(f"s_add_u32 s{sT0}, s{sT0}, {RED}"); g.e(f"v_lshlrev_b32 v12, 4, v{vLANE}"); g.e(f"v_add_u32 v12, s{sT0}, v12")
    g.e("ds_write_b128 v12, v[16:19]"); g.e("s_waitcnt lgkmcnt(0)"); g.e("s_barrier")
    g.e(f"s_cmp_ge_u32 s{sWAVE}, 2"); g.e("s_cbranch_scc1 L_exit")
    g.e(f"v_lshrrev_b32 v12, 5, v{vTID}"); g.e(f"v_bfe_u32 v13, v{vTID}, 2, 3"); g.e(f"v_and_b32 v14, 3, v{vTID}")
    g.e("v_lshlrev_b32 v15, 3, v12"); g.e("v_lshl_add_u32 v15, v14, 1, v15")
    g.e("v_lshrrev_b32 v16, 4, v15"); g.e("v_lshlrev_b32 v16, 10, v16")
    g.e("v_bfe_u32 v17, v15, 2, 2"); g.e("v_lshl_add_u32 v17, v17, 4, v13"); g.e("v_lshl_add_u32 v16, v17, 4, v16")
    g.e("v_and_b32 v17, 3, v15"); g.e("v_lshl_add_u32 v16, v17, 2, v16"); g.e(f"v_add_u32 v16, {RED}, v16")
    g.e("ds_read_b64 v[20:21], v16"); g.e("ds_read_b64 v[22:23], v16 offset:4096"); g.e("ds_read_b64 v[24:25], v16 offset:2048"); g.e("ds_read_b64 v[26:27], v16 offset:6144")
    g.e("s_waitcnt lgkmcnt(0)")
    for e in range(2):
        g.e(f"v_add_f32 v{20+e}, v{20+e}, v{22+e}"); g.e(f"v_add_f32 v{24+e}, v{24+e}, v{26+e}")
        g.e(f"v_mul_f32 v28, 0xbfb8aa3b, v{20+e}"); g.e("v_exp_f32 v28, v28"); g.e("v_add_f32 v28, 1.0, v28"); g.e("v_rcp_f32 v28, v28")
        g.e(f"v_mul_f32 v{20+e}, v{20+e}, v28"); g.e(f"v_mul_f32 v{20+e}, v{20+e}, v{24+e}")
    g.e("v_cvt_pk_bf16_f32 v20, v20, v21")
    g.e(f"s_lshl_b32 s{sT0}, s{sF0}, 4"); g.e(f"s_add_u32 s{sT0}, s{sT0}, {ACT}"); g.e(f"v_lshlrev_b32 v12, 2, v{vTID}")
    g.e(f"v_cmp_gt_u32 vcc, 96, v{vTID}"); g.e(f"s_and_saveexec_b64 {sr(sEX,2)}, vcc")
    g.e(f"buffer_store_dword v20, v12, {sr(sWS,4)}, s{sT0} offen sc1")
    g.e("s_branch L_exit")
    g.lab("L_D")
    Lok = g.uid("dok")
    g.e(f"s_sub_u32 s{sT0}, s{sJ}, 24"); g.e(f"s_lshl_b32 s{sCGD}, s{sXCD}, 2"); g.e(f"s_add_u32 s{sCGD}, s{sCGD}, s{sT0}")
    g.e(f"s_cmp_lt_u32 s{sJ}, 28"); g.e(f"s_cbranch_scc1 {Lok}")
    g.e(f"s_cmp_eq_u32 s{sXCD}, 0"); g.e("s_cbranch_scc0 L_exit")
    g.e(f"s_add_u32 s{sCGD}, s{sJ}, 4")
    g.lab(Lok)
    g.e(f"v_lshrrev_b32 v13, 1, v{vLANE}")
    g.e("v_and_b32 v15, 0x13, v13"); g.e("v_and_b32 v19, 4, v13"); g.e("v_lshlrev_b32 v19, 1, v19"); g.e("v_or_b32 v15, v15, v19")
    g.e("v_and_b32 v19, 8, v13"); g.e("v_lshrrev_b32 v19, 1, v19"); g.e("v_or_b32 v15, v15, v19")
    g.e("v_mul_u32_u24 v15, 1152, v15"); g.e(f"v_and_b32 v14, 1, v{vLANE}"); g.e("v_lshl_add_u32 v15, v14, 4, v15"); g.e(f"s_lshl_b32 s{sT0}, s{sCGD}, 5"); g.e(f"v_add_u32 v16, s{sT0}, v15")
    g.e(f"s_mul_i32 s{sT2}, s{sWAVE}, {18*32*1152}"); g.e(f"s_mul_i32 s{sT1}, s{sWAVE}, {18*1024}")
    for s in range(18):
        g.e(f"s_add_u32 m0, s{sT1}, {1024*s}"); g.e(f"s_add_u32 s{sT0}, s{sT2}, {s*32*1152}")
        g.e(f"buffer_load_dwordx4 v16, {sr(sDN,4)}, s{sT0} offen lds")
    top8(g)
    g.e(f"v_lshrrev_b32 v12, 3, v{vLANE}"); g.e("v_lshlrev_b32 v13, 2, v12"); g.e("ds_bpermute_b32 v230, v13, v87"); g.e("s_waitcnt lgkmcnt(0)")
    g.e("v_mul_u32_u24 v231, 1152, v230"); g.e(f"v_and_b32 v13, 7, v{vLANE}"); g.e("v_lshl_add_u32 v231, v13, 2, v231"); g.e(f"s_lshl_b32 s{sT0}, s{sCGD}, 5"); g.e(f"v_add_u32 v231, s{sT0}, v231")
    g.e("v_lshlrev_b32 v22, 2, v230")
    L, Ld = g.uid("bg"), g.uid("bgd")
    g.e(f"s_mov_b32 s{sCNT}, 0"); g.e(f"s_mov_b32 s{sT1}, {RWS}")
    g.lab(L)
    g.e(f"buffer_load_dword v232, v231, {sr(sOUT,4)}, 0 offen sc1"); g.e(f"buffer_load_dword v233, v22, {sr(sWS,4)}, s{sT1} offen sc1")
    g.e(f"s_add_u32 s{sCNT}, s{sCNT}, 1"); g.e("s_waitcnt vmcnt(0)")
    g.e("v_max_u32 v13, v232, v233"); g.e("v_cmp_eq_u32 vcc, -1, v13")
    g.e(f"s_cmp_gt_u32 s{sCNT}, {SPIN//4}"); g.e(f"s_cbranch_scc1 {Ld}"); g.e(f"s_cbranch_vccnz {L}")
    g.lab(Ld)
    g.e("v_mul_f32 v233, 0xbfb8aa3b, v233"); g.e("v_exp_f32 v233, v233"); g.e("v_add_f32 v233, 1.0, v233"); g.e("v_rcp_f32 v233, v233")
    g.e("v_mul_u32_u24 v12, 32, v75"); g.e(f"v_and_b32 v13, 3, v{vLANE}"); g.e("v_lshl_add_u32 v12, v13, 3, v12"); g.e(f"s_mul_i32 s{sT0}, s{sWAVE}, {18*1024}"); g.e(f"v_add_u32 v12, s{sT0}, v12")
    for s in range(18):
        for h in range(2): g.e(f"ds_read_b64_tr_b16 {vr(148+4*s+2*h,2)}, v12 offset:{s*1024 + h*256}")
        if s % 4 == 3: g.e("s_waitcnt lgkmcnt(4)")
    g.e(f"v_and_b32 v12, 7, v{vN}"); g.e("v_lshlrev_b32 v12, 4, v12"); g.e(f"v_lshl_add_u32 v12, v{vGQ}, 7, v12")
    g.e(f"s_mul_i32 s{sT1}, s{sWAVE}, {18*512}"); g.e(f"s_add_u32 s{sT1}, s{sT1}, {ACT}")
    L, Ld = g.uid("ag"), g.uid("agd")
    g.e(f"s_mov_b32 s{sCNT}, 0")
    g.lab(L)
    for s in range(18):
        if s % 8 == 0 and s: g.e(f"s_add_u32 s{sT1}, s{sT1}, 4096")
        g.e(f"buffer_load_dwordx4 {vr(76+4*s,4)}, v12, {sr(sWS,4)}, s{sT1} offen offset:{(s % 8)*512} sc1")
    g.e(f"s_sub_u32 s{sT1}, s{sT1}, 8192")
    g.e(f"s_add_u32 s{sCNT}, s{sCNT}, 1"); g.e("s_waitcnt vmcnt(0)")
    g.e("v_max3_u32 v13, v76, v77, v78")
    for k in range(79, 147, 2): g.e(f"v_max3_u32 v13, v13, v{k}, v{k+1}")
    g.e("v_max_u32 v13, v13, v147"); g.e("v_cmp_eq_u32 vcc, -1, v13")
    g.e(f"s_cmp_gt_u32 s{sCNT}, {SPIN//8}"); g.e(f"s_cbranch_scc1 {Ld}"); g.e(f"s_cbranch_vccnz {L}")
    g.lab(Ld)
    g.e("s_waitcnt lgkmcnt(0)")
    for s in range(18): mfma32(g, 16 + 4*(s & 1), 148+4*s, 76+4*s, None if s < 2 else 16 + 4*(s & 1))
    for r in range(4): g.e(f"v_add_f32 v{16+r}, v{16+r}, v{20+r}")
    g.e(f"s_lshl_b32 s{sT0}, s{sWAVE}, 10"); g.e(f"s_add_u32 s{sT0}, s{sT0}, {RED}"); g.e(f"v_lshlrev_b32 v12, 4, v{vLANE}"); g.e(f"v_add_u32 v12, s{sT0}, v12")
    g.e("ds_write_b128 v12, v[16:19]"); g.e("s_waitcnt lgkmcnt(0)"); g.e("s_barrier")
    g.e(f"s_cmp_eq_u32 s{sWAVE}, 0"); g.e("s_cbranch_scc0 L_exit")
    g.e(f"v_lshrrev_b32 v12, 3, v{vLANE}"); g.e(f"v_bfe_u32 v13, v{vLANE}, 1, 2"); g.e("v_lshl_add_u32 v12, v13, 4, v12"); g.e("v_lshlrev_b32 v12, 4, v12")
    g.e(f"v_and_b32 v13, 1, v{vLANE}"); g.e("v_lshl_add_u32 v12, v13, 3, v12"); g.e(f"v_add_u32 v12, {RED}, v12")
    for w in range(8): g.e(f"ds_read_b64 v[{24+2*w}:{25+2*w}], v12 offset:{1024*w}")
    g.e("s_waitcnt lgkmcnt(0)")
    for w in range(1, 8): g.e(f"v_add_f32 v24, v24, v{24+2*w}"); g.e(f"v_add_f32 v25, v25, v{25+2*w}")
    g.e("v_lshlrev_b32 v12, 16, v232"); g.e("v_and_b32 v13, 0xffff0000, v232")
    g.e("v_fma_f32 v12, v24, v233, v12"); g.e("v_fma_f32 v13, v25, v233, v13"); g.e("v_cvt_pk_bf16_f32 v12, v12, v13")
    g.e(f"buffer_store_dword v12, v231, {sr(sOUT,4)}, 0 offen sc1")
```

```python
from gen import *

def ln_stats(g, vs0, out):
    for tt in range(2):
        s_, q_ = vs0 + 2*tt, vs0 + 2*tt + 1
        rs, nm = out + 2*tt, out + 2*tt + 1
        g.e(f"v_mul_f32 v{s_}, 0x3ae38e39, v{s_}")
        g.e(f"v_mul_f32 v{q_}, 0x3ae38e39, v{q_}")
        g.e(f"v_fma_f32 v{q_}, -v{s_}, v{s_}, v{q_}")
        g.e(f"v_max_f32 v{q_}, 0, v{q_}")
        g.e(f"v_add_f32 v{q_}, 0x3727c5ac, v{q_}")
        g.e(f"v_rsq_f32 v{rs}, v{q_}")
        g.e(f"v_mul_f32 v{nm}, v{s_}, v{rs}")
        g.e(f"v_sub_f32 v{nm}, 0, v{nm}")

def softmax36(g, P, EP, EN, t0):
    mx, mn, sp, sn = t0, t0+1, t0+2, t0+3
    g.e(f"v_max3_f32 v{mx}, v{P}, v{P+1}, v{P+2}"); g.e(f"v_min3_f32 v{mn}, v{P}, v{P+1}, v{P+2}")
    for f in range(3, 17, 2):
        g.e(f"v_max3_f32 v{mx}, v{mx}, v{P+f}, v{P+f+1}"); g.e(f"v_min3_f32 v{mn}, v{mn}, v{P+f}, v{P+f+1}")
    g.e(f"v_max_f32 v{mx}, v{mx}, v{P+17}"); g.e(f"v_min_f32 v{mn}, v{mn}, v{P+17}")
    g.e(f"v_mul_f32 v{mx}, s{sL2E}, v{mx}"); g.e(f"v_mul_f32 v{mn}, s{sL2E}, v{mn}")
    for f in range(18):
        g.e(f"v_fma_f32 v{EP+f}, v{P+f}, s{sL2E}, -v{mx}")
        g.e(f"v_fma_f32 v{EN+f}, -v{P+f}, s{sL2E}, v{mn}")
    for f in range(18):
        g.e(f"v_exp_f32 v{EP+f}, v{EP+f}"); g.e(f"v_exp_f32 v{EN+f}, v{EN+f}")
    g.e(f"v_add_f32 v{sp}, v{EP}, v{EP+1}"); g.e(f"v_add_f32 v{sn}, v{EN}, v{EN+1}")
    g.e(f"v_add_f32 v{t0+4}, v{EP+2}, v{EP+3}"); g.e(f"v_add_f32 v{t0+5}, v{EN+2}, v{EN+3}")
    for f in range(4, 18, 2):
        g.e(f"v_add_f32 v{sp}, v{sp}, v{EP+f}"); g.e(f"v_add_f32 v{sn}, v{sn}, v{EN+f}")
        g.e(f"v_add_f32 v{t0+4}, v{t0+4}, v{EP+f+1}"); g.e(f"v_add_f32 v{t0+5}, v{t0+5}, v{EN+f+1}")
    g.e(f"v_add_f32 v{sp}, v{sp}, v{t0+4}"); g.e(f"v_add_f32 v{sn}, v{sn}, v{t0+5}")
    g.e(f"v_rcp_f32 v{sp}, v{sp}"); g.e(f"v_rcp_f32 v{sn}, v{sn}")
    for f in range(18):
        g.e(f"v_mul_f32 v{EP+f}, v{EP+f}, v{sp}"); g.e(f"v_mul_f32 v{EN+f}, v{EN+f}, v{sn}")
    for i in range(9):
        g.e(f"v_cvt_pk_bf16_f32 v{P+i}, v{EP+2*i}, v{EP+2*i+1}")
    for i in range(9):
        g.e(f"v_cvt_pk_bf16_f32 v{P+9+i}, v{EN+2*i}, v{EN+2*i+1}")

def stage2(g, KB, D2):
    for j in range(3):
        for tt in range(2): mfma32(g, D2(j,tt), vA2+6*j, KB+6*tt, None)
    for j in range(3):
        for tt in range(2): mfma16(g, D2(j,tt), vA2+6*j+4, KB+6*tt+4, D2(j,tt))
    for j in range(3):
        for r in range(4 if j < 2 else 2):
            g.e(f"v_permlane16_swap_b32 v{D2(j,0)+r}, v{D2(j,1)+r}")

def dump_lds(g, vm, ldsoff, nbytes, dbgoff, waves4=True):
    n = (nbytes + 4095) // 4096
    g.e(f"s_lshl_b32 s{sT0}, s{sWQ}, 10"); g.e(f"v_lshlrev_b32 v12, 4, v{vLANE}"); g.e(f"v_add_u32 v12, s{sT0}, v12")
    g.e(f"s_lshl_b32 s{sT1}, s2, 16"); g.e(f"s_add_u32 s{sT1}, s{sT1}, {DBGA + dbgoff}")
    for i in range(n):
        g.e(f"v_add_u32 v13, {ldsoff + i*4096}, v12")
        g.e(f"ds_read_b128 v[200:203], v13"); g.e("s_waitcnt lgkmcnt(0)")
        g.e(f"s_add_u32 s{sT2}, s{sT1}, {i*4096}")
        g.e(f"buffer_store_dwordx4 v[200:203], v12, {sr(sWS,4)}, s{sT2} offen"); g.e("s_waitcnt vmcnt(0)")

def ready_check(g, vm):
    L, Ld = g.uid("rc"), g.uid("rcd")
    g.e(f"v_lshlrev_b32 v12, 6, v{vLANE}"); g.e(f"v_cmp_gt_u32 vcc, 4, v{vLANE}"); g.e(f"v_mov_b32 v13, 0x7fffffff"); g.e("s_nop 0")
    g.e(f"v_cndmask_b32 v12, v13, v12, vcc")
    g.e(f"s_mov_b32 s{sCNT}, 0")
    g.lab(L)
    g.e(f"buffer_load_dword v13, v12, {sr(sDB,4)}, 0 offen sc1")
    g.e(f"s_add_u32 s{sCNT}, s{sCNT}, 1")
    g.e("s_waitcnt vmcnt(0)")
    g.e(f"v_cmp_eq_u32 vcc, 64, v13")
    g.e(f"s_cmp_gt_u32 s{sCNT}, {SPIN}"); g.e(f"s_cbranch_scc1 {Ld}")
    g.e(f"s_and_b32 s{sT0}, vcc_lo, 15"); g.e(f"s_cmp_eq_u32 s{sT0}, 15"); g.e(f"s_cbranch_scc0 {L}")
    g.lab(Ld)

def k_stream(g, vm, iphi, dma_idx, opts):
    stop = opts.get("stop", "")
    pass1(g, vm, "K", iphi, dma_idx)
    g.e(f"s_lshl_b32 s{sT0}, s{sWQ}, 5"); g.e(f"v_add_u32 v12, s{sT0}, v{vN}"); g.e(f"v_lshlrev_b32 v12, 3, v12"); g.e(f"v_add_u32 v12, {STAT}, v12")
    g.e(f"v_lshlrev_b32 v13, 4, v{vGQ}"); g.e(f"v_add_u32 v13, {CSK}, v13")
    g.e("s_mov_b32 exec_lo, 0"); g.e("s_mov_b32 exec_hi, 0xffff")
    for tt in range(2): g.e(f"ds_write_b32 v12, v{kACC(2,tt)} offset:{128*tt}")
    g.e("s_mov_b32 exec_lo, 0x00010001"); g.e("s_mov_b32 exec_hi, 0x00010001")
    for i in range(3):
        for r in range(4): g.e(f"ds_add_f32 v13, v{kCS(i)+r} offset:{64*i+4*r}")
    g.e("s_mov_b64 exec, -1")
    vm.wait(g, vm.iwq)
    g.e("s_waitcnt lgkmcnt(0)"); g.e("s_barrier")
    for tt in range(2): g.e(f"ds_read_b64 v[{76+2*tt}:{77+2*tt}], v12 offset:{128*tt}")
    for i in range(3): g.e(f"ds_read_b128 v[{80+4*i}:{83+4*i}], v13 offset:{64*i}")
    g.e("s_waitcnt lgkmcnt(3)")
    ln_stats(g, 76, 92)
    g.e("s_waitcnt lgkmcnt(0)")
    KB = 96
    for tt in range(2):
        rs, nm = 92+2*tt, 93+2*tt
        for i in range(3):
            for r in range(4):
                g.e(f"v_mul_f32 v{108+r}, v{nm}, v{80+4*i+r}")
            for r in range(4):
                g.e(f"v_fma_f32 v{kACC(i,tt)+r}, v{kACC(i,tt)+r}, v{rs}, v{108+r}")
            g.e(f"v_cvt_pk_bf16_f32 v{KB+6*tt+2*i}, v{kACC(i,tt)}, v{kACC(i,tt)+1}")
            g.e(f"v_cvt_pk_bf16_f32 v{KB+6*tt+2*i+1}, v{kACC(i,tt)+2}, v{kACC(i,tt)+3}")
    g.e(f"s_lshl_b32 s{sT0}, s{sWQ}, 5"); g.e(f"v_add_u32 v12, s{sT0}, v{vN}"); g.e(f"v_mul_u32_u24 v12, 80, v12")
    g.e(f"v_cmp_eq_u32 vcc, 2, v{vGQ}"); g.e(f"v_mov_b32 v13, 32"); g.e(f"v_mov_b32 v14, 72"); g.e(f"v_cndmask_b32 v13, v13, v14, vcc")
    g.e(f"v_add_u32 v12, v12, v13"); g.e(f"v_add_u32 v12, {VIM}, v12")
    g.e(f"v_mov_b32 v14, 0x3f80"); g.e(f"v_mov_b32 v15, 0")
    for tt in range(2):
        g.e(f"v_cndmask_b32 v{108+2*tt}, v{KB+6*tt+4}, v14, vcc"); g.e(f"v_cndmask_b32 v{109+2*tt}, v{KB+6*tt+5}, v15, vcc")
    g.e("s_mov_b32 exec_lo, 0xffff0000"); g.e("s_mov_b32 exec_hi, 0x0000ffff")
    for tt in range(2): g.e(f"ds_write_b64 v12, v[{108+2*tt}:{109+2*tt}] offset:{1280*tt}")
    g.e("s_mov_b64 exec, -1")
    stage2(g, KB, kACC)
    softmax36(g, 16, 76, 94, 112)
    g.e(f"v_and_b32 v12, 1, v{vGQ}"); g.e(f"v_lshlrev_b32 v12, 4, v12"); g.e(f"v_add_u32 v12, v12, v{vN}")
    g.e(f"s_lshl_b32 s{sT0}, s{sWQ}, 5"); g.e(f"v_add_u32 v12, s{sT0}, v12"); g.e(f"v_mul_u32_u24 v12, 160, v12")
    g.e(f"v_lshrrev_b32 v13, 1, v{vGQ}"); g.e(f"v_mul_u32_u24 v13, 80, v13"); g.e(f"v_add3_u32 v12, v12, v13, 0"); g.e(f"v_add_u32 v12, {PHI}, v12")
    for i in range(4): g.e(f"ds_write_b128 v12, v[{16+4*i}:{19+4*i}] offset:{16*i}")
    g.e(f"ds_write_b64 v12, v[32:33] offset:64")
    lds_signal(g, 0, 12, 13)
    lds_wait(g, 0, 8, 12, 13)
    if stop == "A1":
        dump_lds(g, vm, PHI, 20480, 0); dump_lds(g, vm, VIM, 10240, 32768)
        g.e("s_branch L_exit"); return
    g.e(f"s_lshr_b32 s{sT4}, s{sWQ}, 1"); g.e(f"s_and_b32 s{sT5}, s{sWQ}, 1")
    g.e(f"v_lshrrev_b32 v12, 2, v{vLANE}"); g.e(f"v_and_b32 v13, 3, v{vLANE}")
    g.e(f"v_mul_u32_u24 v14, 160, v12"); g.e(f"v_lshl_add_u32 v14, v13, 3, v14"); g.e(f"s_mul_i32 s{sT0}, s{sT4}, 80"); g.e(f"s_add_u32 s{sT0}, s{sT0}, {PHI}")
    g.e(f"v_add_u32 v36, s{sT0}, v14")
    g.e(f"v_mul_u32_u24 v14, 80, v12")
    g.e(f"s_mul_i32 s{sT0}, s{sT4}, 40"); g.e(f"v_lshl_add_u32 v15, v13, 3, s{sT0}")
    g.e(f"v_cmp_eq_u32 vcc, 1, v13"); g.e(f"v_mov_b32 v38, 32"); g.e(f"v_mov_b32 v39, 72"); g.e(f"v_cndmask_b32 v38, v38, v39, vcc")
    g.e(f"s_cmp_eq_u32 s{sT5}, 0"); g.e("s_cselect_b64 vcc, -1, 0"); g.e("s_nop 1"); g.e(f"v_cndmask_b32 v15, v38, v15, vcc")
    g.e(f"v_add_u32 v37, v14, v15"); g.e(f"v_add_u32 v37, {VIM}, v37")
    AF = lambda u, a: 76 + 12*u + 4*a
    BF = lambda u: 124 + 4*u
    DK = lambda a: 16 + 4*a
    for u in range(4):
        for h in range(2): g.e(f"ds_read_b64_tr_b16 {vr(BF(u)+2*h,2)}, v37 offset:{u*2560 + h*1280}")
        for a in range(3):
            for h in range(2): g.e(f"ds_read_b64_tr_b16 {vr(AF(u,a)+2*h,2)}, v36 offset:{u*5120 + h*2560 + 32*a}")
    for u in range(4):
        g.e(f"s_waitcnt lgkmcnt({8*(3-u) if 8*(3-u) < 16 else 15})")
        for a in range(3): mfma32(g, DK(a), AF(u,a), BF(u), None if u == 0 else DK(a))
    g.e(f"v_cmp_eq_u32 vcc, 0, v{vGQ}")
    for a in range(3):
        g.e(f"v_cvt_pk_bf16_f32 v{28+2*a}, v{DK(a)}, v{DK(a)+1}"); g.e(f"v_cvt_pk_bf16_f32 v{29+2*a}, v{DK(a)+2}, v{DK(a)+3}")
    g.e(f"v_mov_b32 v14, 0"); g.e(f"v_cndmask_b32 v32, v14, v32, vcc"); g.e(f"v_cndmask_b32 v33, v14, v33, vcc")
    g.e(f"s_mul_i32 s{sT3}, s{sWQ}, 1536"); g.e(f"s_add_u32 s{sT3}, s{sT3}, {KVS}")
    g.e(f"v_mul_u32_u24 v12, 80, v{vN}"); g.e(f"v_lshl_add_u32 v12, v{vGQ}, 3, v12"); g.e(f"v_add_u32 v12, s{sT3}, v12")
    g.e(f"ds_write_b64 v12, v[28:29]"); g.e(f"ds_write_b64 v12, v[30:31] offset:32")
    g.e("s_mov_b32 exec_hi, 0"); g.e(f"ds_write_b64 v12, v[32:33] offset:64"); g.e("s_mov_b32 exec_hi, -1")
    ready_check(g, vm)
    g.e(f"s_lshl_b32 s{sT1}, s{sHP}, 4"); g.e(f"s_add_u32 s{sT1}, s{sT1}, s{sTT}"); g.e(f"s_mul_i32 s{sT1}, s{sT1}, 3072"); g.e(f"s_add_u32 s{sT1}, s{sT1}, {KVP}")
    Lsh, Lpd = g.uid("sh"), g.uid("pd")
    g.e("s_waitcnt lgkmcnt(0)")
    g.e(f"v_lshlrev_b32 v13, 4, v{vLANE}")
    g.e(f"s_cmp_eq_u32 s{sT5}, 0"); g.e(f"s_cbranch_scc0 {Lsh}")
    g.e(f"s_mul_i32 s{sT2}, s{sT4}, 1680"); g.e(f"s_add_u32 s{sT1}, s{sT1}, s{sT2}")
    g.e(f"v_add_u32 v12, s{sT3}, v13")
    g.e(f"ds_read_b128 v[16:19], v12"); g.e(f"ds_read_b128 v[20:23], v12 offset:1024")
    g.e("s_waitcnt lgkmcnt(1)")
    g.e(f"buffer_store_dwordx4 v[16:19], v13, {sr(sWS,4)}, s{sT1} offen sc1")
    g.e("s_waitcnt lgkmcnt(0)")
    g.e("s_mov_b32 exec_lo, 0xffff"); g.e("s_mov_b32 exec_hi, 0")
    g.e(f"buffer_store_dwordx4 v[20:23], v13, {sr(sWS,4)}, s{sT1} offen offset:1024 sc1")
    g.e("s_mov_b64 exec, -1")
    g.e(f"s_branch {Lpd}")
    g.lab(Lsh)
    g.e(f"s_mul_i32 s{sT2}, s{sT4}, 160"); g.e(f"v_add_u32 v14, s{sT2}, v13")
    g.e(f"v_add_u32 v15, 160, v13")
    g.e(f"v_cmp_gt_u32 vcc, 10, v{vLANE}"); g.e("s_nop 1"); g.e(f"v_cndmask_b32 v14, v15, v14, vcc"); g.e(f"v_add_u32 v14, s{sT3}, v14")
    g.e(f"ds_read_b128 v[16:19], v14")
    g.e(f"s_mul_i32 s{sT2}, s{sT4}, 240"); g.e(f"s_add_u32 s{sT2}, s{sT2}, 1280"); g.e(f"v_add_u32 v14, s{sT2}, v13")
    g.e(f"s_mul_i32 s{sT2}, s{sT4}, 1520"); g.e(f"s_add_u32 s{sT2}, s{sT2}, 1280"); g.e(f"v_add_u32 v15, s{sT2}, v13")
    g.e(f"v_cndmask_b32 v14, v15, v14, vcc")
    g.e(f"v_cmp_gt_u32 vcc, 15, v{vLANE}"); g.e("s_waitcnt lgkmcnt(0)"); g.e(f"v_mov_b32 v20, 0")
    for r in range(4): g.e(f"v_cndmask_b32 v{16+r}, v20, v{16+r}, vcc")
    g.e(f"s_lshl_b32 s{sT2}, s{sT4}, 1"); g.e(f"s_add_u32 s{sT2}, s{sT2}, 15")
    g.e(f"v_cmp_gt_u32 vcc, s{sT2}, v{vLANE}"); g.e(f"s_and_saveexec_b64 {sr(sEX,2)}, vcc")
    g.e(f"buffer_store_dwordx4 v[16:19], v14, {sr(sWS,4)}, s{sT1} offen sc1")
    g.e(f"s_mov_b64 exec, {sr(sEX,2)}")
    g.lab(Lpd)
    if stop == "A2":
        g.e("s_waitcnt vmcnt(0)"); g.e("s_branch L_exit"); return
    g.e(f"v_mul_u32_u24 v12, 3072, v{vGQ}"); g.e(f"v_lshl_add_u32 v12, v{vN}, 4, v12")
    g.e(f"s_mul_i32 s{sT1}, s{sHP}, 49152"); g.e(f"s_mul_i32 s{sT2}, s{sWQ}, 768"); g.e(f"s_add_u32 s{sT1}, s{sT1}, s{sT2}"); g.e(f"s_add_u32 s{sT1}, s{sT1}, {KVP}")
    g.e(f"v_and_b32 v13, 1, v{vN}"); g.e(f"v_cmp_eq_u32 vcc, 1, v13"); g.e(f"v_mov_b32 v14, 0x3f80"); g.e(f"v_mov_b32 v15, 0x3f800000"); g.e(f"v_cndmask_b32 v13, v14, v15, vcc")
    g.e(f"v_lshrrev_b32 v14, 1, v{vN}"); g.e(f"v_mov_b32 v15, 0")
    for q in range(4):
        g.e(f"v_cmp_eq_u32 vcc, {q}, v14"); g.e("s_nop 1"); g.e(f"v_cndmask_b32 v{124+q}, v15, v13, vcc")
    g.e("s_waitcnt vmcnt(0)")
    L, Ld = g.uid("kg"), g.uid("kgd")
    g.e(f"s_mov_b32 s{sCNT}, 0")
    g.lab(L)
    for b in range(3):
        for i in range(4):
            g.e(f"s_add_u32 s{sT2}, s{sT1}, {i*12288 + b*256}")
            g.e(f"buffer_load_dwordx4 {vr(76+16*b+4*i,4)}, v12, {sr(sWS,4)}, s{sT2} offen sc1")
    g.e(f"s_add_u32 s{sCNT}, s{sCNT}, 1")
    for b in range(3):
        for i in range(4):
            g.e(f"s_waitcnt vmcnt({11-4*b-i})")
            mfma32(g, 128+4*b, 124, 76+16*b+4*i, None if i == 0 else 128+4*b)
    g.e(f"v_add_f32 v13, v128, v132"); g.e(f"v_add_f32 v13, v13, v136"); g.e(f"v_cmp_u_f32 vcc, v13, v13")
    g.e(f"s_cmp_gt_u32 s{sCNT}, {SPIN//8}"); g.e(f"s_cbranch_scc1 {Ld}")
    g.e(f"s_cbranch_vccnz {L}")
    g.lab(Ld)
    g.e(f"s_mul_i32 s{sT0}, s{sWQ}, 768"); g.e(f"s_add_u32 s{sT0}, s{sT0}, {KVT}")
    g.e(f"v_lshlrev_b32 v12, 4, v{vN}"); g.e(f"v_lshl_add_u32 v12, v{vGQ}, 3, v12"); g.e(f"v_add_u32 v12, s{sT0}, v12")
    for b in range(3):
        g.e(f"v_cvt_pk_bf16_f32 v{16+2*b}, v{128+4*b}, v{129+4*b}"); g.e(f"v_cvt_pk_bf16_f32 v{17+2*b}, v{130+4*b}, v{131+4*b}")
    g.e("s_mov_b32 exec_hi, 0")
    for b in range(3): g.e(f"ds_write_b64 v12, v[{16+2*b}:{17+2*b}] offset:{256*b}")
    g.e("s_mov_b32 exec_hi, -1")
    lds_signal(g, 1, 12, 13)
    if stop == "B1":
        lds_wait(g, 1, 4, 12, 13)
        dump_lds(g, vm, KVT, 3072, 49152)
        g.e("s_branch L_exit"); return
    g.e("s_branch L_B2")

def v_stream(g, vm, iphi, dma_idx, opts):
    stop = opts.get("stop", "")
    pass1(g, vm, "V", iphi, dma_idx)
    g.e(f"v_and_b32 v13, 3, v{vN}")
    for tt in range(2):
        g.e(f"v_mov_b32 v{108+tt}, v{vSQ(tt)}")
    for q in range(1, 4):
        g.e(f"v_cmp_eq_u32 vcc, {q}, v13"); g.e("s_nop 1")
        for tt in range(2): g.e(f"v_cndmask_b32 v{108+tt}, v{108+tt}, v{vSQ(tt)+q}, vcc")
    g.e(f"s_lshl_b32 s{sT0}, s{sWQ}, 5"); g.e(f"v_add_u32 v12, s{sT0}, v{vN}"); g.e(f"v_lshlrev_b32 v12, 3, v12"); g.e(f"v_add_u32 v12, {STAT}, v12")
    g.e(f"v_lshlrev_b32 v13, 4, v{vGQ}"); g.e(f"v_add_u32 v13, {CSV}, v13")
    g.e("s_mov_b32 exec_lo, 0x00f0000f"); g.e("s_mov_b32 exec_hi, 0xf0000f00")
    for tt in range(2): g.e(f"ds_write_b32 v12, v{108+tt} offset:{128*tt+4}")
    g.e("s_mov_b32 exec_lo, 0x00010001"); g.e("s_mov_b32 exec_hi, 0x00010001")
    for i in range(2):
        for r in range(4): g.e(f"ds_add_f32 v13, v{vCS(i)+r} offset:{64*i+4*r}")
    g.e("s_mov_b64 exec, -1")
    vm.wait(g, vm.iwq)
    g.e("s_waitcnt lgkmcnt(0)"); g.e("s_barrier")
    for tt in range(2): g.e(f"ds_read_b64 v[{76+2*tt}:{77+2*tt}], v12 offset:{128*tt}")
    for i in range(2): g.e(f"ds_read_b128 v[{80+4*i}:{83+4*i}], v13 offset:{64*i}")
    g.e("s_waitcnt lgkmcnt(2)")
    ln_stats(g, 76, 92)
    g.e("s_waitcnt lgkmcnt(0)")
    g.e(f"s_lshl_b32 s{sT0}, s{sWQ}, 5"); g.e(f"v_add_u32 v12, s{sT0}, v{vN}"); g.e(f"v_mul_u32_u24 v12, 80, v12"); g.e(f"v_lshl_add_u32 v12, v{vGQ}, 3, v12")
    g.e(f"v_add_u32 v12, {VIM}, v12")
    for tt in range(2):
        rs, nm = 92+2*tt, 93+2*tt
        for i in range(2):
            for r in range(4): g.e(f"v_mul_f32 v{100+r}, v{nm}, v{80+4*i+r}")
            for r in range(4): g.e(f"v_fma_f32 v{vACC(i,tt)+r}, v{vACC(i,tt)+r}, v{rs}, v{100+r}")
            g.e(f"v_cvt_pk_bf16_f32 v104, v{vACC(i,tt)}, v{vACC(i,tt)+1}"); g.e(f"v_cvt_pk_bf16_f32 v105, v{vACC(i,tt)+2}, v{vACC(i,tt)+3}")
            g.e(f"ds_write_b64 v12, v[104:105] offset:{1280*tt + 40*i}")
            g.e("s_waitcnt lgkmcnt(0)")
    lds_signal(g, 0, 12, 13)
    if stop in ("A1", "A2"):
        g.e("s_branch L_exit"); return
    qACC = kACC; qCS = kCS
    qWB = lambda b, i: 76 + 12*b + 4*i if False else (96 if b else 76) + 4*i
    g.e(f"v_mul_u32_u24 v12, 80, v75"); g.e(f"v_and_b32 v13, 3, v{vLANE}"); g.e(f"v_lshl_add_u32 v12, v13, 3, v12")
    g.e(f"v_add_u32 v12, s{sSH}, v12"); g.e(f"v_add_u32 v{vWa}, {WQ}, v12")
    for i in range(3):
        for r in range(4): g.e(f"v_mov_b32 v{qCS(i)+r}, 0")
    def qreads(u):
        b = u & 1
        for i in range(3):
            for h in range(2): g.e(f"ds_read_b64_tr_b16 {vr(qWB(b,i)+2*h,2)}, v{vWa} offset:{u*2560 + h*640 + 32*i}")
    qreads(0)
    for u in range(18):
        if u < 17: qreads(u+1); g.e("s_waitcnt lgkmcnt(6)")
        else: g.e("s_waitcnt lgkmcnt(0)")
        b = u & 1
        for i in range(3):
            for tt in range(2): mfma32(g, qACC(i,tt), qWB(b,i), vXF(u,tt), None if u == 0 else qACC(i,tt))
        L = g.uid("cs"); g.e(f"s_cmp_eq_u32 s{sWQ}, {u & 3}"); g.e(f"s_cbranch_scc0 {L}")
        for i in range(3): mfma32(g, qCS(i), qWB(b,i), vONES, qCS(i))
        g.lab(L)
    g.e(f"v_lshlrev_b32 v13, 4, v{vGQ}"); g.e(f"v_add_u32 v13, {CSQ}, v13")
    g.e("s_mov_b32 exec_lo, 0x00010001"); g.e("s_mov_b32 exec_hi, 0x00010001")
    for i in range(3):
        for r in range(4): g.e(f"ds_add_f32 v13, v{qCS(i)+r} offset:{64*i+4*r}")
    g.e("s_mov_b64 exec, -1")
    lds_signal(g, 4, 12, 14)
    lds_wait(g, 4, 4, 12, 14)
    for i in range(3): g.e(f"ds_read_b128 v[{80+4*i}:{83+4*i}], v13 offset:{64*i}")
    g.e("s_waitcnt lgkmcnt(0)")
    KB = 96
    for tt in range(2):
        rs, nm = 92+2*tt, 93+2*tt
        for i in range(3):
            for r in range(4): g.e(f"v_mul_f32 v{108+r}, v{nm}, v{80+4*i+r}")
            for r in range(4): g.e(f"v_fma_f32 v{qACC(i,tt)+r}, v{qACC(i,tt)+r}, v{rs}, v{108+r}")
            g.e(f"v_cvt_pk_bf16_f32 v{KB+6*tt+2*i}, v{qACC(i,tt)}, v{qACC(i,tt)+1}")
            g.e(f"v_cvt_pk_bf16_f32 v{KB+6*tt+2*i+1}, v{qACC(i,tt)+2}, v{qACC(i,tt)+3}")
    stage2(g, KB, qACC)
    softmax36(g, 16, 76, 94, 112)
    g.e("v_mov_b32 v34, 0"); g.e("v_mov_b32 v35, 0")
    g.e(f"v_lshrrev_b32 v12, 1, v{vGQ}"); g.e(f"v_mul_u32_u24 v12, 19, v12"); g.e(f"v_and_b32 v13, 3, v{vN}"); g.e(f"v_add_u32 v12, v12, v13")
    g.e(f"v_mul_u32_u24 v12, 80, v12"); g.e(f"v_add_u32 v12, {KVT}, v12")
    AF = lambda k: 120 + 4*k
    for k in range(100): g.e(f"v_mov_b32 v{120+k}, 0")
    lds_wait(g, 1, 4, 13, 14)
    g.e("s_mov_b32 exec_lo, 0x00f0000f"); g.e("s_mov_b32 exec_hi, 0xf0000f00")
    for i in range(5):
        for c in range(5): g.e(f"ds_read_b128 {vr(AF(5*i+c),4)}, v12 offset:{320*i + 16*c}")
    g.e("s_mov_b64 exec, -1")
    DO = lambda i: 76 + 4*i
    for i in range(5):
        g.e(f"s_waitcnt lgkmcnt({min(15, 5*(4-i))})")
        for c in range(5): mfma32(g, DO(i), AF(5*i+c), 16+4*c, None if c == 0 else DO(i))
    g.e("v_add_f32 v94, 0x358637bd, v94"); g.e("v_rcp_f32 v94, v94")
    for d in range(18): g.e(f"v_mul_f32 v{76+d}, v{76+d}, v94")
    for i in range(9): g.e(f"v_cvt_pk_bf16_f32 v{100+i}, v{76+2*i}, v{77+2*i}")
    g.e("v_mov_b32 v110, v108"); g.e("v_mov_b32 v109, 0")
    g.e("v_permlane32_swap_b32 v109, v110")
    g.e(f"v_cmp_lt_u32 vcc, 31, v{vLANE}")
    S1 = [(100,109),(101,100),(102,101),(103,102)]; S2 = [(104,103),(105,104),(106,105),(107,106)]
    g.e("s_nop 1")
    for k,(a,b) in enumerate(S1): g.e(f"v_cndmask_b32 v{16+k}, v{a}, v{b}, vcc")
    for k,(a,b) in enumerate(S2): g.e(f"v_cndmask_b32 v{20+k}, v{a}, v{b}, vcc")
    g.e(f"s_lshl_b32 s{sT0}, s{sTT}, 3"); g.e(f"s_lshl_b32 s{sT1}, s{sWQ}, 1"); g.e(f"s_add_u32 s{sT0}, s{sT0}, s{sT1}"); g.e(f"s_mul_i32 s{sT0}, s{sT0}, 18432")
    g.e(f"s_add_u32 s{sT0}, s{sT0}, {OWS}"); g.e(f"s_lshl_b32 s{sT1}, s{sHP}, 10"); g.e(f"s_add_u32 s{sT1}, s{sT1}, s{sT0}")
    g.e(f"v_and_b32 v12, 1, v{vGQ}"); g.e(f"v_mul_u32_u24 v12, 18432, v12")
    g.e(f"v_lshrrev_b32 v13, 1, v{vGQ}"); g.e(f"v_lshlrev_b32 v13, 9, v13"); g.e(f"v_lshl_add_u32 v13, v{vN}, 4, v13"); g.e(f"v_add_u32 v13, v12, v13")
    ready_check(g, vm) if False else None
    g.e(f"buffer_store_dwordx4 v[16:19], v13, {sr(sWS,4)}, s{sT1} offen sc1")
    g.e(f"buffer_store_dwordx4 v[20:23], v13, {sr(sWS,4)}, s{sT1} offen offset:256 sc1")
    g.e(f"s_lshl_b32 s{sT1}, s{sHP}, 7"); g.e(f"s_add_u32 s{sT1}, s{sT1}, s{sT0}"); g.e(f"s_add_u32 s{sT1}, s{sT1}, 16384")
    g.e(f"v_lshl_add_u32 v13, v{vN}, 3, v12"); g.e("v_mov_b32 v24, v107"); g.e("v_mov_b32 v25, v108")
    g.e("s_mov_b32 exec_lo, 0")
    g.e(f"buffer_store_dwordx2 v[24:25], v13, {sr(sWS,4)}, s{sT1} offen sc1")
    g.e("s_mov_b32 exec_lo, -1")
    if stop == "B1":
        g.e("s_waitcnt vmcnt(0)"); g.e("s_branch L_exit"); return
    g.e("s_branch L_B2")
```

```python
import sys
KNAME = "sequential_preLN__linear_kernel_hedgehog__moe_arch_mod__prompt_kernel"

S, D, H, DH, F = 2048, 576, 32, 18, 4608
KVP, OWS, STP, RWS, MRS, ACT = 0, 786432, 3145728, 3276800, 3284992, 3301376
POIS_PER_WG = 13312
DBGA = 0x1000000
SLOT, WOFF, NSLOT = 26624, 16384, 6
MISC = 159744
WBLK = MISC; STAT = MISC
CSK, CSV, CSQ = MISC + 3552, MISC + 3552 + 192, MISC + 3552 + 320
FLG = MISC + 4064
WQ = 3 * SLOT
PHI = 5 * SLOT
KVS = PHI + 20480
VIM = 0
KVT = 10240
WO1 = 13312
LDS_TOTAL = 163840
SPIN = 40000

class G:
    def __init__(s):
        s.L = []; s.n = 0
    def e(s, t): s.L.append("  " + t)
    def c(s, t): s.L.append("  ; " + t)
    def lab(s, t): s.L.append(t + ":")
    def uid(s, p): s.n += 1; return f"L_{p}_{s.n}"
    def nop(s, n):
        while n > 0:
            k = min(n, 16); s.e(f"s_nop {k-1}"); n -= k
    def text(s): return "\n".join(s.L) + "\n"

def vr(a, n=1): return f"v{a}" if n == 1 else f"v[{a}:{a+n-1}]"
def sr(a, n=1): return f"s{a}" if n == 1 else f"s[{a}:{a+n-1}]"

sX, sW, sWS, sOUT, sWO, sG, sU, sDN, sPH, sDB, sWR = 4, 8, 12, 16, 20, 24, 28, 32, 36, 40, 44
sWAVE, sWQ, sTT, sHP, sTG, sCG, sXCD, sJ, sSH = 48, 49, 50, 51, 52, 53, 54, 55, 56
sT0, sT1, sT2, sT3, sT4, sT5 = 57, 58, 59, 60, 61, 62
sM0X, sM0W = 88, 89
sMASK8 = 90
sL2E = 92
sCNT = 93
sEX = 94
sKA = 64

def srd(g, d, plo, size):
    g.e(f"s_mov_b32 s{d}, s{plo}"); g.e(f"s_mov_b32 s{d+1}, s{plo+1}")
    g.e(f"s_mov_b32 s{d+2}, {size}"); g.e(f"s_mov_b32 s{d+3}, 0x20000")

def mfma32(g, d, a, b, c): g.e(f"v_mfma_f32_16x16x32_bf16 {vr(d,4)}, {vr(a,4)}, {vr(b,4)}, {('0' if c is None else vr(c,4))}")
def mfma16(g, d, a, b, c): g.e(f"v_mfma_f32_16x16x16_bf16 {vr(d,4)}, {vr(a,2)}, {vr(b,2)}, {('0' if c is None else vr(c,4))}")

def lds_signal(g, flag, vtmpa, vtmpb):
    g.e("s_waitcnt lgkmcnt(0)")
    g.e(f"v_mov_b32 v{vtmpa}, {FLG + 4*flag}"); g.e(f"v_mov_b32 v{vtmpb}, 1")
    g.e("s_mov_b64 exec, 1")
    g.e(f"ds_add_u32 v{vtmpa}, v{vtmpb}")
    g.e("s_mov_b64 exec, -1")

def lds_wait(g, flag, target, vtmpa, vtmpb):
    L = g.uid("lw"); Ld = g.uid("lwd")
    g.e(f"v_mov_b32 v{vtmpa}, {FLG + 4*flag}")
    g.e(f"s_mov_b32 s{sCNT}, 0")
    g.lab(L)
    g.e(f"ds_read_b32 v{vtmpb}, v{vtmpa}")
    g.e(f"s_add_u32 s{sCNT}, s{sCNT}, 1")
    g.e("s_waitcnt lgkmcnt(0)")
    g.e(f"v_readfirstlane_b32 s{sT0}, v{vtmpb}")
    g.e(f"s_cmp_gt_u32 s{sCNT}, {SPIN}")
    g.e(f"s_cbranch_scc1 {Ld}")
    g.e(f"s_cmp_lt_u32 s{sT0}, {target}")
    g.e(f"s_cbranch_scc1 {L}")
    g.lab(Ld)

class VM:
    def __init__(s): s.n = 0
    def issue(s, k=1): s.n += k; return s.n - 1
    def wait(s, g, idx):
        out = s.n - 1 - idx
        assert out >= 0
        g.e(f"s_waitcnt vmcnt({min(out,63)})")

vTID, vLANE, vXo0, vXo1, vWo, vQo, vXa0, vXa1, vWa, vW2 = 0, 1, 2, 3, 4, 5, 6, 7, 8, 9
vN, vGQ = 10, 11
vONES = 52
vA2 = 56

def dma_stage(g, vm, st):
    slot = (st % NSLOT) * SLOT
    for i, vo in ((0, vXo0), (1, vXo1)):
        g.e(f"s_add_u32 m0, s{sM0X}, {slot + i*1024}")
        g.e(f"s_mov_b32 s{sT0}, {128*st}")
        g.e(f"buffer_load_dwordx4 v{vo}, {sr(sX,4)}, s{sT0} offen lds"); vm.issue()
    g.e("s_mov_b32 exec_hi, 0xff")
    for i2 in (0, 1):
        g.e(f"s_add_u32 m0, s{sM0W}, {slot + WOFF + i2*640}")
        g.e(f"s_mov_b32 s{sT0}, {st*64*3456 + i2*8*3456}")
        g.e(f"buffer_load_dwordx4 v{vWo}, {sr(sW,4)}, s{sT0} offen lds"); vm.issue()
    g.e("s_mov_b32 exec_hi, -1")

def dma_wq(g, vm):
    g.e("s_mov_b32 exec_hi, 0x0fffffff")
    for t in range(6):
        g.e(f"s_mul_i32 s{sT1}, s{sWAVE}, 960")
        g.e(f"s_add_u32 m0, s{sT1}, {WQ + t*96*80}")
        g.e(f"s_mov_b32 s{sT0}, {t*96*3456}")
        g.e(f"buffer_load_dwordx4 v{vQo}, {sr(sW,4)}, s{sT0} offen lds"); vm.issue()
    g.e("s_mov_b32 exec_hi, -1")

def prologue(g, vm, dbg):
    g.e("s_cmp_ge_u32 s2, 256"); g.e("s_cbranch_scc1 L_exit")
    g.e(f"s_load_dwordx4 {sr(sKA,4)}, s[0:1], 0")
    g.e(f"s_load_dwordx4 {sr(sKA+4,4)}, s[0:1], 16")
    g.e(f"s_load_dwordx16 {sr(sKA+8,16)}, s[0:1], 32")
    g.e(f"s_and_b32 s{sXCD}, s2, 7"); g.e(f"s_lshr_b32 s{sJ}, s2, 3")
    g.e(f"s_and_b32 s{sT0}, s{sXCD}, 1"); g.e(f"s_lshl_b32 s{sT0}, s{sT0}, 3"); g.e(f"s_and_b32 s{sT1}, s{sJ}, 7"); g.e(f"s_add_u32 s{sTT}, s{sT0}, s{sT1}")
    g.e(f"s_lshr_b32 s{sT0}, s{sXCD}, 1"); g.e(f"s_lshl_b32 s{sT0}, s{sT0}, 2"); g.e(f"s_lshr_b32 s{sT1}, s{sJ}, 3"); g.e(f"s_add_u32 s{sHP}, s{sT0}, s{sT1}")
    g.e(f"s_lshl_b32 s{sT0}, s{sXCD}, 3"); g.e(f"s_lshr_b32 s{sT1}, s{sJ}, 2"); g.e(f"s_add_u32 s{sTG}, s{sT0}, s{sT1}"); g.e(f"s_and_b32 s{sCG}, s{sJ}, 3")
    g.e(f"v_lshrrev_b32 v12, 6, v0"); g.e(f"v_and_b32 v{vLANE}, 63, v0")
    g.e(f"v_and_b32 v{vN}, 15, v0")
    g.e(f"v_readfirstlane_b32 s{sWAVE}, v12")
    g.e(f"v_lshrrev_b32 v{vGQ}, 4, v{vLANE}")
    g.e(f"s_mul_i32 s{sT2}, s{sHP}, 72"); g.e(f"s_and_b32 s{sSH}, s{sT2}, 15"); g.e(f"s_and_b32 s{sT2}, s{sT2}, 0xfffffff0")
    g.e(f"s_and_b32 s{sWQ}, s{sWAVE}, 3")
    g.e(f"s_lshl_b32 s{sT0}, s{sTT}, 7"); g.e(f"s_lshl_b32 s{sT1}, s{sWAVE}, 4"); g.e(f"s_add_u32 s{sT0}, s{sT0}, s{sT1}")
    g.e(f"v_lshrrev_b32 v12, 3, v{vLANE}"); g.e(f"v_add_u32 v12, s{sT0}, v12"); g.e(f"v_mul_u32_u24 v12, 1152, v12")
    g.e(f"v_and_b32 v13, 7, v{vLANE}"); g.e(f"v_xor_b32 v13, v13, v{vGQ}"); g.e(f"v_lshlrev_b32 v13, 4, v13")
    g.e(f"v_add_u32 v{vXo0}, v12, v13")
    g.e(f"v_xor_b32 v13, 64, v13"); g.e(f"v_add_u32 v12, 9216, v12"); g.e(f"v_add_u32 v{vXo1}, v12, v13")
    g.e(f"v_mul_u32_u24 v12, 26, v{vLANE}"); g.e(f"v_lshrrev_b32 v12, 8, v12")
    g.e(f"v_mul_u32_u24 v13, 10, v12"); g.e(f"v_sub_u32 v13, v{vLANE}, v13")
    g.e(f"s_lshr_b32 s{sT0}, s{sWAVE}, 1"); g.e(f"s_and_b32 s{sT0}, s{sT0}, 1"); g.e(f"s_lshl_b32 s{sT0}, s{sT0}, 4")
    g.e(f"s_and_b32 s{sT1}, s{sWAVE}, 1"); g.e(f"s_lshl_b32 s{sT1}, s{sT1}, 2"); g.e(f"s_add_u32 s{sT0}, s{sT0}, s{sT1}")
    g.e(f"s_lshr_b32 s{sT1}, s{sWAVE}, 2"); g.e(f"s_lshl_b32 s{sT1}, s{sT1}, 5"); g.e(f"s_add_u32 s{sT0}, s{sT0}, s{sT1}")
    g.e(f"v_add_u32 v12, s{sT0}, v12"); g.e(f"v_mul_u32_u24 v12, 3456, v12")
    g.e(f"v_cmp_lt_u32 vcc, 4, v13"); g.e(f"v_mov_b32 v14, 1152"); g.e(f"v_mov_b32 v15, {2304-80}")
    g.e(f"v_cndmask_b32 v14, v14, v15, vcc"); g.e(f"v_lshlrev_b32 v13, 4, v13")
    g.e(f"v_add3_u32 v12, v12, v13, v14"); g.e(f"v_add_u32 v{vWo}, s{sT2}, v12")
    g.e(f"s_lshl_b32 s{sM0X}, s{sWAVE}, 11"); g.e(f"s_mul_i32 s{sM0W}, s{sWAVE}, 1280")
    g.e(f"v_mul_u32_u24 v12, 52, v{vLANE}"); g.e(f"v_lshrrev_b32 v12, 8, v12")
    g.e(f"v_mul_u32_u24 v13, 5, v12"); g.e(f"v_sub_u32 v13, v{vLANE}, v13")
    g.e(f"s_mul_i32 s{sT0}, s{sWAVE}, 12"); g.e(f"v_add_u32 v12, s{sT0}, v12")
    g.e(f"v_and_b32 v14, 0xfffffff3, v12"); g.e(f"v_and_b32 v15, 4, v12"); g.e(f"v_lshlrev_b32 v15, 1, v15"); g.e(f"v_or_b32 v14, v14, v15")
    g.e(f"v_and_b32 v15, 8, v12"); g.e(f"v_lshrrev_b32 v15, 1, v15"); g.e(f"v_or_b32 v14, v14, v15")
    g.e(f"v_mul_u32_u24 v14, 3456, v14"); g.e(f"v_lshlrev_b32 v13, 4, v13"); g.e(f"v_add_u32 v14, v14, v13"); g.e(f"v_add_u32 v{vQo}, s{sT2}, v14")
    g.e("s_waitcnt lgkmcnt(0)")
    srd(g, sX, sKA+0, 2359296); srd(g, sW, sKA+2, 1990656); srd(g, sPH, sKA+4, 20736)
    g.e(f"s_mul_i32 s{sT0}, s{sHP}, 1296"); g.e(f"v_lshlrev_b32 v12, 2, v{vTID}")
    g.e(f"v_cmp_gt_u32 vcc, 324, v{vTID}"); g.e(f"v_mov_b32 v13, 0x7fffffff"); g.e(f"v_cndmask_b32 v12, v13, v12, vcc")
    g.e(f"buffer_load_dword v74, v12, {sr(sPH,4)}, s{sT0} offen"); iphi = vm.issue()
    dma_idx = {}
    for st in range(3): dma_stage(g, vm, st); dma_idx[st] = vm.n - 1
    srd(g, sOUT, sKA+18, 2359296); srd(g, sWS, sKA+22, 268435456)
    g.e(f"v_mov_b32 v76, -1"); g.e(f"v_mov_b32 v77, -1"); g.e(f"v_mov_b32 v78, -1"); g.e(f"v_mov_b32 v79, -1")
    g.e(f"v_lshlrev_b32 v12, 4, v{vLANE}")
    g.e(f"s_mul_i32 s{sT0}, s2, {POIS_PER_WG}"); g.e(f"s_lshl_b32 s{sT1}, s{sWAVE}, 10"); g.e(f"s_add_u32 s{sT0}, s{sT0}, s{sT1}")
    g.e(f"buffer_store_dwordx4 v[76:79], v12, {sr(sWS,4)}, s{sT0} offen sc1"); vm.issue()
    La, Lb = g.uid("p"), g.uid("p")
    g.e(f"s_mul_i32 s{sT2}, s2, 9216")
    g.e(f"s_cmp_lt_u32 s{sWAVE}, 5"); g.e(f"s_cbranch_scc0 {La}")
    g.e(f"s_add_u32 s{sT0}, s{sT0}, 8192")
    g.e(f"buffer_store_dwordx4 v[76:79], v12, {sr(sWS,4)}, s{sT0} offen sc1")
    g.e(f"s_branch {Lb}")
    g.lab(La)
    g.e(f"s_sub_u32 s{sT0}, s{sWAVE}, 5"); g.e(f"s_lshl_b32 s{sT0}, s{sT0}, 10"); g.e(f"s_add_u32 s{sT0}, s{sT0}, s{sT2}")
    g.e(f"buffer_store_dwordx4 v[76:79], v12, {sr(sOUT,4)}, s{sT0} offen sc1")
    g.lab(Lb); vm.issue()
    g.e(f"s_add_u32 s{sT0}, s{sWAVE}, 3"); g.e(f"s_min_u32 s{sT0}, s{sT0}, 8"); g.e(f"s_lshl_b32 s{sT0}, s{sT0}, 10"); g.e(f"s_add_u32 s{sT0}, s{sT0}, s{sT2}")
    g.e(f"buffer_store_dwordx4 v[76:79], v12, {sr(sOUT,4)}, s{sT0} offen sc1"); ipois = vm.issue()
    for st in range(3, 6): dma_stage(g, vm, st); dma_idx[st] = vm.n - 1
    srd(g, sWO, sKA+6, 663552); srd(g, sWR, sKA+10, 1152); srd(g, sG, sKA+12, 5308416); srd(g, sU, sKA+14, 5308416)
    srd(g, sDN, sKA+16, 5308416); srd(g, sDB, sKA+20, 256)
    g.e(f"v_mov_b32 v80, 0"); g.e(f"v_mov_b32 v81, 0"); g.e(f"v_mov_b32 v82, 0"); g.e(f"v_mov_b32 v83, 0")
    g.e(f"v_lshlrev_b32 v12, 4, v{vTID}"); g.e(f"v_add_u32 v12, {MISC}, v12")
    Lz = g.uid("z")
    g.e(f"s_cmp_ge_u32 s{sWAVE}, 4"); g.e(f"s_cbranch_scc1 {Lz}")
    g.e(f"ds_write_b128 v12, v[80:83]")
    g.lab(Lz)
    g.e(f"s_lshl_b32 s{sT0}, s{sWQ}, 5"); g.e(f"v_add_u32 v12, s{sT0}, v{vN}"); g.e(f"v_lshlrev_b32 v12, 7, v12")
    g.e(f"v_lshrrev_b32 v13, 1, v{vN}"); g.e(f"v_xor_b32 v13, v13, v{vGQ}"); g.e(f"v_lshlrev_b32 v13, 4, v13")
    g.e(f"v_add_u32 v{vXa0}, v12, v13"); g.e(f"v_xor_b32 v{vXa1}, 64, v{vXa0}")
    g.e(f"v_lshrrev_b32 v12, 1, v{vGQ}"); g.e(f"v_lshlrev_b32 v12, 4, v12"); g.e(f"v_and_b32 v13, 1, v{vGQ}"); g.e(f"v_lshlrev_b32 v13, 2, v13")
    g.e(f"v_lshrrev_b32 v14, 2, v{vN}"); g.e(f"v_add3_u32 v12, v12, v13, v14")
    g.e(f"v_and_b32 v13, 3, v{vLANE}")
    g.e(f"v_mov_b32 v75, v12")
    g.e(f"v_mul_u32_u24 v14, 160, v12"); g.e(f"v_add_u32 v14, s{sSH}, v14")
    g.e(f"v_lshlrev_b32 v15, 3, v13"); g.e(f"v_add_u32 v{vWa}, v14, v15")
    g.e(f"v_cmp_eq_u32 vcc, 1, v13"); g.e(f"v_mov_b32 v15, 64"); g.e(f"v_mov_b32 v12, 112"); g.e(f"v_cndmask_b32 v15, v15, v12, vcc")
    g.e(f"v_add_u32 v{vW2}, v14, v15")
    for i in range(4): g.e(f"v_mov_b32 v{vONES+i}, 0x3f803f80")
    g.e(f"s_mov_b32 s{sMASK8}, 0x01000100"); g.e(f"s_mov_b32 s{sMASK8+1}, 0x01000100")
    g.e(f"s_mov_b32 s{sL2E}, 0x3fb8aa3b")
    return iphi, dma_idx

def wblk_scatter(g):
    g.e(f"v_cmp_lt_u32 vcc, 161, v{vTID}"); g.e(f"v_mov_b32 v12, 0"); g.e(f"v_mov_b32 v13, 162"); g.e(f"v_cndmask_b32 v12, v12, v13, vcc")
    g.e(f"v_sub_u32 v12, v{vTID}, v12")
    g.e(f"v_mov_b32 v14, 0"); g.e(f"v_mov_b32 v13, 18"); g.e(f"v_cndmask_b32 v13, v14, v13, vcc")
    g.e(f"v_mul_u32_u24 v14, 57, v12"); g.e(f"v_lshrrev_b32 v14, 9, v14")
    g.e(f"v_mul_u32_u24 v15, 9, v14"); g.e(f"v_sub_u32 v15, v12, v15")
    g.e(f"v_lshl_add_u32 v15, v15, 1, v13"); g.e(f"v_mul_u32_u24 v15, 96, v15")
    g.e(f"v_add_u32 v14, v14, v13"); g.e(f"v_lshl_add_u32 v15, v14, 1, v15"); g.e(f"v_add_u32 v15, {WBLK}, v15")
    g.e(f"v_cmp_gt_u32 vcc, 324, v{vTID}")
    g.e(f"s_and_saveexec_b64 {sr(sEX,2)}, vcc")
    L = g.uid("ws"); g.e(f"s_cbranch_execz {L}")
    g.e(f"ds_write_b16 v15, v74"); g.e(f"ds_write_b16_d16_hi v15, v74 offset:96")
    g.lab(L); g.e(f"s_mov_b64 exec, {sr(sEX,2)}")

def a2_read(g):
    for j in range(3):
        g.e(f"v_and_b32 v12, 7, v{vN}"); g.e(f"v_add_u32 v12, {8*j}, v12")
        g.e(f"v_lshrrev_b32 v13, 3, v{vN}"); g.e(f"v_mul_u32_u24 v13, 18, v13"); g.e(f"v_add_u32 v13, v13, v12")
        g.e(f"v_cmp_gt_u32 vcc, 18, v12"); g.e(f"v_mov_b32 v14, 36"); g.e(f"v_cndmask_b32 v13, v14, v13, vcc")
        g.e(f"v_mul_u32_u24 v13, 96, v13"); g.e(f"v_lshl_add_u32 v13, v{vGQ}, 3, v13"); g.e(f"v_add_u32 v13, {WBLK}, v13")
        g.e(f"ds_read_b64 {vr(vA2+6*j,2)}, v13"); g.e(f"ds_read_b64 {vr(vA2+6*j+2,2)}, v13 offset:32"); g.e(f"ds_read_b64 {vr(vA2+6*j+4,2)}, v13 offset:64")

kACC = lambda i, tt: 16 + 8*i + 4*tt
kCS = lambda i: 40 + 4*i
kXB = lambda b, tt: 76 + 8*b + 4*tt
kWB = lambda b, i: 92 + 12*b + 4*i
vXF = lambda u, tt: 112 + 8*u + 4*tt
vACC = lambda i, tt: 16 + 8*i + 4*tt
vSQ = lambda tt: 32 + 4*tt
vCS = lambda i: 40 + 4*i
vWB = lambda b, i: 76 + 8*b + 4*i

def reads(g, kind, u):
    ks = u & 1; b = u & 1
    xa = vXa1 if ks else vXa0
    n = 0
    for tt in range(2):
        d = kXB(b, tt) if kind == "K" else vXF(u, tt)
        g.e(f"ds_read_b128 {vr(d,4)}, v{xa} offset:{2048*tt}"); n += 1
    base = WOFF + ks*5120
    if kind == "K":
        for i in range(3):
            for h in range(2):
                if i < 2: g.e(f"ds_read_b64_tr_b16 {vr(kWB(b,i)+2*h,2)}, v{vWa} offset:{base + h*1280 + 32*i}")
                else:     g.e(f"ds_read_b64_tr_b16 {vr(kWB(b,i)+2*h,2)}, v{vW2} offset:{base + h*1280}")
                n += 1
    else:
        for i in range(2):
            for h in range(2):
                g.e(f"ds_read_b64_tr_b16 {vr(vWB(b,i)+2*h,2)}, v{vWa} offset:{base + h*1280 + 80 + 40*i}"); n += 1
    return n

def mfmas(g, kind, u):
    b = u & 1; first = (u == 0)
    if kind == "K":
        for r in range(4): g.e(f"v_cndmask_b32_e64 v{kWB(b,2)+r}, v{kWB(b,2)+r}, v{vONES}, {sr(sMASK8,2)}")
        for i in range(3):
            for tt in range(2):
                mfma32(g, kACC(i,tt), kWB(b,i), kXB(b,tt), None if first else kACC(i,tt))
        L = g.uid("cs"); g.e(f"s_cmp_eq_u32 s{sWQ}, {u & 3}"); g.e(f"s_cbranch_scc0 {L}")
        for i in range(3): mfma32(g, kCS(i), kWB(b,i), vONES, kCS(i))
        g.lab(L)
    else:
        for i in range(2):
            for tt in range(2):
                mfma32(g, vACC(i,tt), vWB(b,i), vXF(u,tt), None if first else vACC(i,tt))
        for tt in range(2): mfma32(g, vSQ(tt), vXF(u,tt), vXF(u,tt), None if first else vSQ(tt))
        L = g.uid("cs"); g.e(f"s_cmp_eq_u32 s{sWQ}, {u & 3}"); g.e(f"s_cbranch_scc0 {L}")
        for i in range(2): mfma32(g, vCS(i), vWB(b,i), vONES, vCS(i))
        g.lab(L)

def rebase(g, st_from, st_to):
    d = ((st_to % NSLOT) - (st_from % NSLOT)) * SLOT
    for v in (vXa0, vXa1, vWa, vW2):
        g.e(f"v_add_u32 v{v}, {d & 0xffffffff}, v{v}")

def pass1(g, vm, kind, iphi, dma_idx):
    ncs = 3 if kind == "K" else 2
    for i in range(ncs):
        for r in range(4): g.e(f"v_mov_b32 v{40+4*i+r}, 0")
    vm.wait(g, dma_idx[0]); g.e("s_waitcnt lgkmcnt(0)"); g.e("s_barrier")
    wblk_scatter(g)
    n = reads(g, kind, 0)
    for u in range(18):
        st = u >> 1
        if u & 1:
            g.e("s_waitcnt lgkmcnt(0)")
            if st + 1 < 9:
                vm.wait(g, dma_idx[st+1])
                g.e("s_barrier")
                if st == 0: a2_read(g)
                if st + 1 == 3:
                    L = g.uid("pc"); g.e(f"s_cmp_eq_u32 s{sWAVE}, 0"); g.e(f"s_cbranch_scc0 {L}")
                    g.e(f"s_and_b32 s{sT0}, s2, 3"); g.e(f"s_lshl_b32 s{sT0}, s{sT0}, 6"); g.e(f"v_mov_b32 v12, s{sT0}"); g.e("v_mov_b32 v13, 1")
                    g.e("s_mov_b64 exec, 1"); g.e(f"buffer_atomic_add v13, v12, {sr(sDB,4)}, 0 offen sc1"); g.e("s_mov_b64 exec, -1")
                    g.lab(L)
                if st + 6 < 9:
                    dma_stage(g, vm, st + 6); dma_idx[st+6] = vm.n - 1
                if st + 1 == 5:
                    dma_wq(g, vm); vm.iwq = vm.n - 1
                rebase(g, st, st + 1)
                n = reads(g, kind, u + 1)
        else:
            n = reads(g, kind, u + 1)
            g.e(f"s_waitcnt lgkmcnt({n})")
        mfmas(g, kind, u)

def build(opts):
    g = G()
    vm = VM()
    iphi, dma0 = prologue(g, vm, opts)
    g.e(f"s_cmp_ge_u32 s{sWAVE}, 4"); g.e("s_cbranch_scc1 L_V")
    import copy
    vmK = copy.copy(vm); vmV = copy.copy(vm)
    from phases import k_stream, v_stream
    k_stream(g, vmK, iphi, dict(dma0), opts)
    g.lab("L_V")
    v_stream(g, vmV, iphi, dict(dma0), opts)
    if opts.get("stop","") in ("A1","A2","B1"):
        g.lab("L_B2")
    else:
        from phaseB import phase_B2
        phase_B2(g, opts)
        if opts.get("stop","") != "B2":
            from phaseC import phase_CD
            phase_CD(g, opts)
    g.lab("L_exit")
    g.e("s_endpgm")
    hdr = open("cdna_kernels/" + KNAME[:-7] + ".s.ref").read().split("; Override launch geometry")[0]
    s = hdr + f"; @launch grid=(256,1,1) block=(512,1,1) lds={LDS_TOTAL}\n"
    s += '.amdgcn_target "amdgcn-amd-amdhsa--gfx950"\n.text\n'
    s += f".globl {KNAME}\n.p2align 8\n.type {KNAME},@function\n{KNAME}:\n"
    from hazard import fix
    lines, ins = fix(g.L)
    sys.stderr.write(f'hazard nops inserted: {ins}, lines {len(lines)}\n')
    s += '\n'.join(lines) + '\n'
    s += f""".section .rodata,"a"
.p2align 6
.amdhsa_kernel {KNAME}
  .amdhsa_next_free_vgpr 256
  .amdhsa_next_free_sgpr 102
  .amdhsa_accum_offset 256
  .amdhsa_group_segment_fixed_size 0
  .amdhsa_kernarg_size 96
  .amdhsa_user_sgpr_count 2
  .amdhsa_user_sgpr_kernarg_segment_ptr 1
  .amdhsa_system_sgpr_workgroup_id_x 1
.end_amdhsa_kernel
"""
    return s

if __name__ == "__main__":
    opts = dict(a.split("=") for a in sys.argv[2:])
    open(sys.argv[1], "w").write(build(opts))
```

```python
from g8 import *
import g8 as g3
from g8 import stamp, stamp_cnt

LNMODE = 0
def ln_stats(g, vs0, out):
    for tt in range(2):
        s_, q_ = vs0 + 2*tt, vs0 + 2*tt + 1
        rs, nm = out + 2*tt, out + 2*tt + 1
        g.e(f"v_mul_f32 v{s_}, 0x3ae38e39, v{s_}"); g.e(f"v_mul_f32 v{q_}, 0x3ae38e39, v{q_}")
        g.e(f"v_fma_f32 v{q_}, -v{s_}, v{s_}, v{q_}"); g.e(f"v_max_f32 v{q_}, 0, v{q_}"); g.e(f"v_add_f32 v{q_}, 0x3727c5ac, v{q_}")
        g.e(f"v_rsq_f32 v{rs}, v{q_}"); g.e(f"v_mul_f32 v{nm}, v{s_}, v{rs}"); g.e(f"v_sub_f32 v{nm}, 0, v{nm}")

def softmax36(g, P, EP, EN, t0):
    mx, mn = t0, t0+2
    g.e(f"v_max3_f32 v{mx}, v{P}, v{P+1}, v{P+2}"); g.e(f"v_min3_f32 v{mn}, v{P}, v{P+1}, v{P+2}")
    for f in range(3, 17, 2):
        g.e(f"v_max3_f32 v{mx}, v{mx}, v{P+f}, v{P+f+1}"); g.e(f"v_min3_f32 v{mn}, v{mn}, v{P+f}, v{P+f+1}")
    g.e(f"v_max_f32 v{mx}, v{mx}, v{P+17}"); g.e(f"v_min_f32 v{mn}, v{mn}, v{P+17}")
    g.e(f"v_mul_f32 v{mx}, s{sL2E}, v{mx}"); g.e(f"v_mul_f32 v{mn}, s{sL2E}, v{mn}"); g.e(f"v_mov_b32 v{t0+4}, s{sL2E}")
    for f in range(0, 18, 2):
        g.e(f"v_pk_fma_f32 v[{EP+f}:{EP+f+1}], v[{P+f}:{P+f+1}], v[{t0+4}:{t0+5}], v[{mx}:{mx+1}] op_sel_hi:[1,0,0] neg_lo:[0,0,1] neg_hi:[0,0,1]")
        g.e(f"v_pk_fma_f32 v[{EN+f}:{EN+f+1}], v[{P+f}:{P+f+1}], v[{t0+4}:{t0+5}], v[{mn}:{mn+1}] op_sel_hi:[1,0,0] neg_lo:[1,0,0] neg_hi:[1,0,0]")
    for f in range(18):
        g.e(f"v_exp_f32 v{EP+f}, v{EP+f}"); g.e(f"v_exp_f32 v{EN+f}, v{EN+f}")
    g.e(f"v_pk_add_f32 v[{t0}:{t0+1}], v[{EP}:{EP+1}], v[{EP+2}:{EP+3}]"); g.e(f"v_pk_add_f32 v[{t0+2}:{t0+3}], v[{EN}:{EN+1}], v[{EN+2}:{EN+3}]")
    g.e(f"v_pk_add_f32 v[{t0+4}:{t0+5}], v[{EP+4}:{EP+5}], v[{EP+6}:{EP+7}]"); g.e(f"v_pk_add_f32 v[{t0+6}:{t0+7}], v[{EN+4}:{EN+5}], v[{EN+6}:{EN+7}]")
    for f in (8, 12):
        g.e(f"v_pk_add_f32 v[{t0}:{t0+1}], v[{t0}:{t0+1}], v[{EP+f}:{EP+f+1}]"); g.e(f"v_pk_add_f32 v[{t0+2}:{t0+3}], v[{t0+2}:{t0+3}], v[{EN+f}:{EN+f+1}]")
        g.e(f"v_pk_add_f32 v[{t0+4}:{t0+5}], v[{t0+4}:{t0+5}], v[{EP+f+2}:{EP+f+3}]"); g.e(f"v_pk_add_f32 v[{t0+6}:{t0+7}], v[{t0+6}:{t0+7}], v[{EN+f+2}:{EN+f+3}]")
    g.e(f"v_pk_add_f32 v[{t0}:{t0+1}], v[{t0}:{t0+1}], v[{EP+16}:{EP+17}]"); g.e(f"v_pk_add_f32 v[{t0+2}:{t0+3}], v[{t0+2}:{t0+3}], v[{EN+16}:{EN+17}]")
    g.e(f"v_pk_add_f32 v[{t0}:{t0+1}], v[{t0}:{t0+1}], v[{t0+4}:{t0+5}]"); g.e(f"v_pk_add_f32 v[{t0+2}:{t0+3}], v[{t0+2}:{t0+3}], v[{t0+6}:{t0+7}]")
    g.e(f"v_add_f32 v{t0}, v{t0}, v{t0+1}"); g.e(f"v_add_f32 v{t0+2}, v{t0+2}, v{t0+3}")
    g.e(f"v_rcp_f32 v{t0}, v{t0}"); g.e(f"v_rcp_f32 v{t0+2}, v{t0+2}")
    for f in range(0, 18, 2):
        g.e(f"v_pk_mul_f32 v[{EP+f}:{EP+f+1}], v[{EP+f}:{EP+f+1}], v[{t0}:{t0+1}] op_sel_hi:[1,0]")
        g.e(f"v_pk_mul_f32 v[{EN+f}:{EN+f+1}], v[{EN+f}:{EN+f+1}], v[{t0+2}:{t0+3}] op_sel_hi:[1,0]")
    for i in range(9): g.e(f"v_cvt_pk_bf16_f32 v{P+i}, v{EP+2*i}, v{EP+2*i+1}")
    for i in range(9): g.e(f"v_cvt_pk_bf16_f32 v{P+9+i}, v{EN+2*i}, v{EN+2*i+1}")

def stage2(g, KB, D2):
    for j in range(3):
        for tt in range(2): mfma32(g, D2(j,tt), vA2+6*j, KB+6*tt, None)
    for j in range(3):
        for tt in range(2): mfma16(g, D2(j,tt), vA2+6*j+4, KB+6*tt+4, D2(j,tt))
    for j in range(3):
        for r in range(4 if j < 2 else 2):
            g.e(f"v_permlane16_swap_b32 v{D2(j,0)+r}, v{D2(j,1)+r}")

def ln_apply(g, ACC, ntile, CSR, ST, KB, tmp, scalar=False):
    if scalar:
        for tt in range(2):
            rs, nm = ST+2*tt, ST+1+2*tt
            for i in range(ntile):
                for r in range(4): g.e(f"v_mul_f32 v{tmp+r}, v{nm}, v{CSR(i)+r}")
                for r in range(4): g.e(f"v_fma_f32 v{ACC(i,tt)+r}, v{ACC(i,tt)+r}, v{rs}, v{tmp+r}")
                g.e(f"v_cvt_pk_bf16_f32 v{KB(tt,i)}, v{ACC(i,tt)}, v{ACC(i,tt)+1}"); g.e(f"v_cvt_pk_bf16_f32 v{KB(tt,i)+1}, v{ACC(i,tt)+2}, v{ACC(i,tt)+3}")
        return
    if LNMODE == 1 and not scalar: return ln_apply(g, ACC, ntile, CSR, ST, KB, tmp, scalar=True)
    if LNMODE == 3:
        for tt in range(2):
            st = ST + 2*tt
            g.e(f"v_mov_b32 v14, v{st+1}")
            for i in range(ntile):
                c = CSR(i); a = ACC(i, tt)
                for h in range(2): g.e(f"v_pk_mul_f32 v[{tmp+2*h}:{tmp+2*h+1}], v[{c+2*h}:{c+2*h+1}], v[14:15] op_sel_hi:[1,0]")
                for h in range(2): g.e(f"v_pk_fma_f32 v[{a+2*h}:{a+2*h+1}], v[{a+2*h}:{a+2*h+1}], v[{st}:{st+1}], v[{tmp+2*h}:{tmp+2*h+1}] op_sel_hi:[1,0,1]")
                g.e(f"v_cvt_pk_bf16_f32 v{KB(tt,i)}, v{a}, v{a+1}"); g.e(f"v_cvt_pk_bf16_f32 v{KB(tt,i)+1}, v{a+2}, v{a+3}")
        return
    for tt in range(2):
        st = ST + 2*tt
        for i in range(ntile):
            c = CSR(i); a = ACC(i, tt)
            for h in range(2):
                g.e(f"v_pk_mul_f32 v[{tmp+2*h}:{tmp+2*h+1}], v[{c+2*h}:{c+2*h+1}], v[{st}:{st+1}] op_sel:[0,1] op_sel_hi:[1,1]")
            for h in range(2):
                g.e(f"v_pk_fma_f32 v[{a+2*h}:{a+2*h+1}], v[{a+2*h}:{a+2*h+1}], v[{st}:{st+1}], v[{tmp+2*h}:{tmp+2*h+1}] op_sel_hi:[1,0,1]")
            if LNMODE == 2: g.e("s_nop 1")
            g.e(f"v_cvt_pk_bf16_f32 v{KB(tt,i)}, v{a}, v{a+1}"); g.e(f"v_cvt_pk_bf16_f32 v{KB(tt,i)+1}, v{a+2}, v{a+3}")

def ready_issue(g, v):
    g.e(f"v_lshlrev_b32 v{v}, 6, v{vLANE}"); g.e(f"v_cmp_gt_u32 vcc, 4, v{vLANE}"); g.e(f"v_mov_b32 v{v+1}, 0x7fffffff"); g.e("s_nop 0")
    g.e(f"v_cndmask_b32 v{v}, v{v+1}, v{v}, vcc")
    g.e(f"buffer_load_dword v{v+1}, v{v}, {sr(sDB,4)}, 0 offen sc1")
def ready_finish(g, v):
    L, Ld = g.uid("rc"), g.uid("rcd")
    g.e(f"s_mov_b32 s{sCNT}, 0"); g.e("s_waitcnt vmcnt(0)")
    g.e(f"v_cmp_eq_u32 vcc, 64, v{v+1}"); g.e("s_nop 1"); g.e(f"s_and_b32 s{sT0}, vcc_lo, 15"); g.e(f"s_cmp_eq_u32 s{sT0}, 15"); g.e(f"s_cbranch_scc1 {Ld}")
    g.lab(L)
    g.e(f"buffer_load_dword v{v+1}, v{v}, {sr(sDB,4)}, 0 offen sc1"); g.e(f"s_add_u32 s{sCNT}, s{sCNT}, 1"); g.e("s_waitcnt vmcnt(0)")
    g.e(f"v_cmp_eq_u32 vcc, 64, v{v+1}")
    g.e(f"s_cmp_gt_u32 s{sCNT}, {SPIN}"); g.e(f"s_cbranch_scc1 {Ld}")
    g.e(f"s_and_b32 s{sT0}, vcc_lo, 15"); g.e(f"s_cmp_eq_u32 s{sT0}, 15"); g.e(f"s_cbranch_scc0 {L}")
    g.lab(Ld)

AW = lambda s: 120 + 4*s
A9 = lambda i: 192 + 4*i
vWOo = 140
def wo_voffsets(g):
    for which in range(3):
        if which < 2: g.e(f"s_lshl_b32 s{sT0}, s{sWQ}, 6"); g.e(f"s_add_u32 s{sT0}, s{sT0}, {256*which}"); g.e(f"v_add_u32 v12, s{sT0}, v{vLANE}")
        else: g.e(f"v_add_u32 v12, 512, v{vLANE}")
        g.e(f"v_mul_u32_u24 v13, 3641, v12"); g.e(f"v_lshrrev_b32 v13, 16, v13")
        g.e(f"v_mul_u32_u24 v14, 18, v13"); g.e(f"v_sub_u32 v14, v12, v14")
        g.e(f"v_lshlrev_b32 v14, 4, v14"); g.e(f"s_mul_i32 s{sT0}, s{sCG}, 288"); g.e(f"v_add_u32 v14, s{sT0}, v14")
        swap23(g, 15, 13, 12)
        g.e(f"v_mul_u32_u24 v15, 1152, v15"); g.e(f"v_add_u32 v{vWOo+which}, v15, v14")
        g.e(f"v_lshrrev_b32 v15, 4, v13"); g.e(f"v_lshlrev_b32 v15, 2, v15"); g.e(f"v_bfe_u32 v12, v13, 2, 1"); g.e(f"v_lshl_add_u32 v15, v12, 1, v15")
        g.e(f"v_bfe_u32 v12, v13, 3, 1"); g.e(f"v_add_u32 v15, v15, v12"); g.e(f"v_mul_u32_u24 v15, 36, v15"); g.e(f"v_and_b32 v12, 3, v13"); g.e(f"v_add3_u32 v15, v15, v12, 32")
        g.e(f"v_mul_u32_u24 v15, 1152, v15"); g.e(f"v_add_u32 v{vWOo+3+which}, v15, v14")
def wo_dma_round(g, s0, ns, base):
    n = 0
    g.e(f"s_lshl_b32 s{sT1}, s{sWQ}, 10")
    for s in range(s0, s0+ns):
        left = s >= 16
        g.e(f"s_mov_b32 s{sT0}, {(s-16)*8*36*1152 if left else s*36*1152}")
        for which in range(2):
            g.e(f"s_add_u32 m0, s{sT1}, {base + (s-s0)*9216 + 4096*which}"); g.e("s_nop 0")
            g.e(f"buffer_load_dwordx4 v{vWOo + which + (3 if left else 0)}, {sr(sWO,4)}, s{sT0} offen {g3.NTWO} lds"); n += 1
    for i in range((ns + 3)//4):
        g.e(f"s_add_u32 s{sT2}, s{sWQ}, {4*i}"); g.e(f"s_min_u32 s{sT2}, s{sT2}, {ns-1}")
        g.e(f"s_mul_i32 s{sT0}, s{sT2}, 9216"); g.e(f"s_add_u32 m0, s{sT0}, {base + 8192}")
        g.e(f"s_add_u32 s{sT2}, s{sT2}, {s0}")
        if s0 + ns > 16:
            La, Lb = g.uid("l8"), g.uid("l8")
            g.e(f"s_cmp_ge_u32 s{sT2}, 16"); g.e(f"s_cbranch_scc1 {La}")
            g.e(f"s_mul_i32 s{sT0}, s{sT2}, {36*1152}"); g.e(f"buffer_load_dwordx4 v{vWOo+2}, {sr(sWO,4)}, s{sT0} offen {g3.NTWO} lds"); g.e(f"s_branch {Lb}")
            g.lab(La); g.e(f"s_sub_u32 s{sT2}, s{sT2}, 16"); g.e(f"s_mul_i32 s{sT0}, s{sT2}, {8*36*1152}"); g.e(f"buffer_load_dwordx4 v{vWOo+5}, {sr(sWO,4)}, s{sT0} offen {g3.NTWO} lds")
            g.lab(Lb)
        else:
            g.e(f"s_mul_i32 s{sT0}, s{sT2}, {36*1152}"); g.e(f"buffer_load_dwordx4 v{vWOo+2}, {sr(sWO,4)}, s{sT0} offen {g3.NTWO} lds")
        n += 1
    return n
def wo_read_round(g, s0, ns, base, t):
    g.e(f"v_mul_u32_u24 v{t}, 288, v{vRP}"); g.e(f"v_and_b32 v{t+1}, 3, v{vLANE}"); g.e(f"v_lshl_add_u32 v{t}, v{t+1}, 3, v{t}")
    g.e(f"v_add_u32 v{t+1}, {base + 256}, v{t}"); g.e(f"s_lshl_b32 s{sT0}, s{sWAVE}, 5"); g.e(f"s_add_u32 s{sT0}, s{sT0}, {base}"); g.e(f"v_add_u32 v{t}, s{sT0}, v{t}")
    g.e(f"v_add_u32 v{t+2}, 64512, v{t}"); g.e(f"v_add_u32 v{t+3}, 64512, v{t+1}")
    def ad(sl, which): return (t + which, sl*9216) if sl < 7 else (t + 2 + which, (sl-7)*9216)
    for s in range(s0, s0+ns):
        a, o = ad(s - s0, 0)
        for h in range(2): g.e(f"ds_read_b64_tr_b16 {vr(AW(s)+2*h,2)}, v{a} offset:{o + h*2304}")
        if (s - s0) % 3 == 2: g.e("s_waitcnt lgkmcnt(6)")
    for s in range(s0, s0+ns):
        L = g.uid("r9"); g.e(f"s_cmp_eq_u32 s{sWAVE}, {s & 7}"); g.e(f"s_cbranch_scc0 {L}")
        a, o = ad(s - s0, 1)
        for h in range(2): g.e(f"ds_read_b64_tr_b16 {vr(A9(s >> 3)+2*h,2)}, v{a} offset:{o + h*2304}")
        g.lab(L)

def small_loads(g):
    g.e(f"s_lshl_b32 s{sT0}, s{sTG}, 5"); g.e(f"v_add_u32 v12, s{sT0}, v{vN}"); g.e(f"v_mul_u32_u24 v12, 1152, v12")
    g.e(f"s_mul_i32 s{sT1}, s{sCG}, 288"); g.e(f"s_lshl_b32 s{sT2}, s{sWAVE}, 5"); g.e(f"s_add_u32 s{sT2}, s{sT2}, s{sT1}")
    g.e(f"v_lshl_add_u32 v13, v{vGQ}, 3, s{sT2}"); g.e(f"v_add_u32 v14, v12, v13")
    g.e(f"buffer_load_dwordx2 v[204:205], v14, {sr(sX,4)}, 0 offen"); g.e(f"s_mov_b32 s{sT0}, 18432")
    g.e(f"buffer_load_dwordx2 v[206:207], v14, {sr(sX,4)}, s{sT0} offen")
    g.e(f"buffer_load_dwordx2 v[208:209], v13, {sr(sWR,4)}, 0 offen")
    g.e(f"s_lshr_b32 s{sT2}, s{sWAVE}, 1"); g.e(f"s_lshl_b32 s{sT2}, s{sT2}, 1"); g.e(f"s_add_u32 s{sT2}, s{sT2}, s{sT1}"); g.e(f"s_add_u32 s{sT2}, s{sT2}, 256")
    g.e(f"v_lshl_add_u32 v13, v{vGQ}, 3, s{sT2}")
    g.e(f"s_and_b32 s{sT3}, s{sWAVE}, 1"); g.e(f"s_mul_i32 s{sT3}, s{sT3}, 18432"); g.e(f"v_add_u32 v14, v12, v13")
    g.e(f"buffer_load_ushort v210, v14, {sr(sX,4)}, s{sT3} offen")
    g.e(f"buffer_load_ushort v211, v13, {sr(sWR,4)}, 0 offen")
def w1_loads(g):
    g.e(f"v_lshlrev_b32 v12, 4, v{vLANE}")
    g.e(f"buffer_load_dwordx4 v[212:215], v12, {sr(sWR,4)}, 0 offen"); g.e(f"buffer_load_dwordx4 v[216:219], v12, {sr(sWR,4)}, 0 offen offset:1024")

def k_stream(g, vm, dma_idx, opts):
    global LNMODE
    LNMODE = int(opts.get('lnmode', '3'))
    pass1(g, vm, "K", dma_idx)
    g.e(f"s_lshl_b32 s{sT0}, s{sWQ}, 5"); g.e(f"v_add_u32 v12, s{sT0}, v{vN}"); g.e(f"v_lshlrev_b32 v12, 3, v12"); g.e(f"v_add_u32 v12, {STAT}, v12")
    g.e("s_mov_b32 exec_lo, 0"); g.e("s_mov_b32 exec_hi, 0xffff")
    for tt in range(2): g.e(f"ds_write_b32 v12, v{kACC(2,tt)} offset:{128*tt}")
    g.e("s_mov_b64 exec, -1")
    stamp(g, 10)
    g.e("s_waitcnt lgkmcnt(0)"); g.e("s_barrier")
    stamp(g, 11)
    for tt in range(2): g.e(f"ds_read_b64 v[{76+2*tt}:{77+2*tt}], v12 offset:{128*tt}")
    g.e("s_waitcnt lgkmcnt(0)")
    ln_stats(g, 76, 92)
    KB = 96
    ln_apply(g, kACC, 3, kCS, 92, lambda tt, i: KB+6*tt+2*i, 108)
    g.e(f"s_lshl_b32 s{sT0}, s{sWQ}, 5"); g.e(f"v_add_u32 v12, s{sT0}, v{vN}"); g.e(f"v_mul_u32_u24 v12, 80, v12")
    g.e(f"v_cmp_eq_u32 vcc, 2, v{vGQ}"); g.e(f"v_mov_b32 v13, 32"); g.e(f"v_mov_b32 v14, 72"); g.e(f"v_cndmask_b32 v13, v13, v14, vcc")
    g.e(f"v_add_u32 v12, v12, v13"); g.e(f"v_mov_b32 v14, 0x3f80"); g.e(f"v_mov_b32 v15, 0")
    for tt in range(2):
        g.e(f"v_cndmask_b32 v{108+2*tt}, v{KB+6*tt+4}, v14, vcc"); g.e(f"v_cndmask_b32 v{109+2*tt}, v{KB+6*tt+5}, v15, vcc")
    g.e("s_mov_b32 exec_lo, 0xffff0000"); g.e("s_mov_b32 exec_hi, 0x0000ffff")
    for tt in range(2): g.e(f"ds_write_b64 v12, v[{108+2*tt}:{109+2*tt}] offset:{VIM + 1280*tt}")
    g.e("s_mov_b64 exec, -1")
    stage2(g, KB, kACC)
    softmax36(g, 16, 76, 94, 112)
    g.e(f"v_and_b32 v12, 1, v{vGQ}"); g.e(f"v_lshlrev_b32 v12, 4, v12"); g.e(f"v_add_u32 v12, v12, v{vN}")
    g.e(f"s_lshl_b32 s{sT0}, s{sWQ}, 5"); g.e(f"v_add_u32 v12, s{sT0}, v12"); g.e(f"v_mul_u32_u24 v12, 160, v12")
    g.e(f"v_lshrrev_b32 v13, 1, v{vGQ}"); g.e(f"v_mul_u32_u24 v13, 80, v13"); g.e(f"v_add_u32 v12, v12, v13"); g.e(f"v_add_u32 v12, {PHI}, v12")
    for i in range(4): g.e(f"ds_write_b128 v12, v[{16+4*i}:{19+4*i}] offset:{16*i}")
    g.e(f"ds_write_b64 v12, v[32:33] offset:64")
    stamp(g, 12)
    lds_signal(g, 0, 12, 13)
    ready_issue(g, 158)
    g.e(f"s_lshr_b32 s{sT4}, s{sWQ}, 1"); g.e(f"s_and_b32 s{sT5}, s{sWQ}, 1")
    g.e(f"v_lshrrev_b32 v12, 2, v{vLANE}"); g.e(f"v_and_b32 v13, 3, v{vLANE}")
    g.e(f"v_mul_u32_u24 v14, 160, v12"); g.e(f"v_lshl_add_u32 v14, v13, 3, v14"); g.e(f"s_mul_i32 s{sT1}, s{sT4}, 80"); g.e(f"s_add_u32 s{sT1}, s{sT1}, {PHI}")
    g.e(f"v_add_u32 v36, s{sT1}, v14")
    g.e(f"v_mul_u32_u24 v14, 80, v12")
    g.e(f"s_mul_i32 s{sT1}, s{sT4}, 40"); g.e(f"v_lshl_add_u32 v15, v13, 3, s{sT1}")
    g.e(f"v_cmp_eq_u32 vcc, 1, v13"); g.e(f"v_mov_b32 v38, 32"); g.e(f"v_mov_b32 v39, 72"); g.e(f"v_cndmask_b32 v38, v38, v39, vcc")
    g.e(f"s_cmp_eq_u32 s{sT5}, 0"); g.e("s_cselect_b64 vcc, -1, 0"); g.e("s_nop 1"); g.e(f"v_cndmask_b32 v15, v38, v15, vcc")
    g.e(f"v_add_u32 v37, v14, v15")
    lds_wait(g, 0, 8, 12, 13)
    stamp(g, 13)
    AF = lambda u, a: 76 + 12*u + 4*a
    BF = lambda u: 124 + 4*u
    DK = lambda a: 16 + 4*a
    for u in range(4):
        for h in range(2): g.e(f"ds_read_b64_tr_b16 {vr(BF(u)+2*h,2)}, v37 offset:{VIM + u*2560 + h*1280}")
        for a in range(3):
            for h in range(2): g.e(f"ds_read_b64_tr_b16 {vr(AF(u,a)+2*h,2)}, v36 offset:{u*5120 + h*2560 + 32*a}")
    for u in range(4):
        g.e(f"s_waitcnt lgkmcnt({min(15, 8*(3-u))})")
        for a in range(3): mfma32(g, DK(a), AF(u,a), BF(u), None if u == 0 else DK(a))
    g.e(f"v_cmp_eq_u32 vcc, 0, v{vGQ}")
    g.e(f"s_mul_i32 s{sT3}, s{sWQ}, 1536"); g.e(f"s_add_u32 s{sT3}, s{sT3}, {KVS}")
    g.e(f"v_mul_u32_u24 v12, 80, v{vN}"); g.e(f"v_lshl_add_u32 v12, v{vGQ}, 3, v12"); g.e(f"v_add_u32 v36, s{sT3}, v12")
    for a in range(3):
        g.e(f"v_cvt_pk_bf16_f32 v{28+2*a}, v{DK(a)}, v{DK(a)+1}"); g.e(f"v_cvt_pk_bf16_f32 v{29+2*a}, v{DK(a)+2}, v{DK(a)+3}")
    g.e(f"v_mov_b32 v14, 0"); g.e(f"v_cndmask_b32 v32, v14, v32, vcc"); g.e(f"v_cndmask_b32 v33, v14, v33, vcc")
    g.e(f"ds_write_b64 v36, v[28:29]"); g.e(f"ds_write_b64 v36, v[30:31] offset:32")
    g.e("s_mov_b32 exec_hi, 0"); g.e(f"ds_write_b64 v36, v[32:33] offset:64"); g.e("s_mov_b32 exec_hi, -1")
    stamp(g, 14)
    ready_finish(g, 158)
    stamp(g, 15)
    g.e(f"s_lshl_b32 s{sT1}, s{sHP}, 4"); g.e(f"s_add_u32 s{sT1}, s{sT1}, s{sTT}"); g.e(f"s_mul_i32 s{sT1}, s{sT1}, 3072"); g.e(f"s_add_u32 s{sT1}, s{sT1}, {KVP}")
    Lsh, Lpd = g.uid("sh"), g.uid("pd")
    g.e("s_waitcnt lgkmcnt(0)")
    g.e(f"v_lshlrev_b32 v13, 4, v{vLANE}")
    g.e(f"s_cmp_eq_u32 s{sT5}, 0"); g.e(f"s_cbranch_scc0 {Lsh}")
    g.e(f"s_mul_i32 s{sT2}, s{sT4}, 1680"); g.e(f"s_add_u32 s{sT1}, s{sT1}, s{sT2}")
    g.e(f"v_add_u32 v12, s{sT3}, v13")
    g.e(f"ds_read_b128 v[16:19], v12"); g.e(f"ds_read_b128 v[20:23], v12 offset:1024")
    g.e("s_waitcnt lgkmcnt(1)")
    g.e(f"buffer_store_dwordx4 v[16:19], v13, {sr(sWS,4)}, s{sT1} offen sc1")
    g.e("s_waitcnt lgkmcnt(0)")
    g.e("s_mov_b32 exec_lo, 0xffff"); g.e("s_mov_b32 exec_hi, 0")
    g.e(f"buffer_store_dwordx4 v[20:23], v13, {sr(sWS,4)}, s{sT1} offen offset:1024 sc1")
    g.e("s_mov_b64 exec, -1"); g.e(f"s_branch {Lpd}")
    g.lab(Lsh)
    g.e(f"s_mul_i32 s{sT2}, s{sT4}, 160"); g.e(f"v_add_u32 v14, s{sT2}, v13"); g.e(f"v_add_u32 v15, 160, v13")
    g.e(f"v_cmp_gt_u32 vcc, 10, v{vLANE}"); g.e("s_nop 1"); g.e(f"v_cndmask_b32 v14, v15, v14, vcc"); g.e(f"v_add_u32 v14, s{sT3}, v14")
    g.e(f"ds_read_b128 v[16:19], v14")
    g.e(f"s_mul_i32 s{sT2}, s{sT4}, 240"); g.e(f"s_add_u32 s{sT2}, s{sT2}, 1280"); g.e(f"v_add_u32 v14, s{sT2}, v13")
    g.e(f"s_mul_i32 s{sT2}, s{sT4}, 1520"); g.e(f"s_add_u32 s{sT2}, s{sT2}, 1280"); g.e(f"v_add_u32 v15, s{sT2}, v13")
    g.e(f"v_cndmask_b32 v14, v15, v14, vcc")
    g.e(f"v_cmp_gt_u32 vcc, 15, v{vLANE}"); g.e("s_waitcnt lgkmcnt(0)"); g.e(f"v_mov_b32 v20, 0")
    for r in range(4): g.e(f"v_cndmask_b32 v{16+r}, v20, v{16+r}, vcc")
    g.e(f"s_lshl_b32 s{sT2}, s{sT4}, 1"); g.e(f"s_add_u32 s{sT2}, s{sT2}, 15")
    g.e(f"v_cmp_gt_u32 vcc, s{sT2}, v{vLANE}"); g.e(f"s_and_saveexec_b64 {sr(sEX,2)}, vcc")
    g.e(f"buffer_store_dwordx4 v[16:19], v14, {sr(sWS,4)}, s{sT1} offen sc1")
    g.e(f"s_mov_b64 exec, {sr(sEX,2)}")
    g.lab(Lpd)
    wo_voffsets(g)
    g.e(f"v_mul_u32_u24 v12, 3072, v{vGQ}"); g.e(f"v_lshl_add_u32 v36, v{vN}, 4, v12")
    g.e(f"s_mul_i32 s{sT3}, s{sHP}, 49152"); g.e(f"s_mul_i32 s{sT2}, s{sWQ}, 768"); g.e(f"s_add_u32 s{sT3}, s{sT3}, s{sT2}"); g.e(f"s_add_u32 s{sT3}, s{sT3}, {KVP}")
    g.e(f"v_and_b32 v13, 1, v{vN}"); g.e(f"v_cmp_eq_u32 vcc, 1, v13"); g.e(f"v_mov_b32 v14, 0x3f80"); g.e(f"v_mov_b32 v15, 0x3f800000"); g.e(f"v_cndmask_b32 v13, v14, v15, vcc")
    g.e(f"v_lshrrev_b32 v14, 1, v{vN}"); g.e(f"v_mov_b32 v15, 0")
    for q in range(4):
        g.e(f"v_cmp_eq_u32 vcc, {q}, v14"); g.e("s_nop 1"); g.e(f"v_cndmask_b32 v{124+q}, v15, v13, vcc")
    n1 = wo_dma_round(g, 0, 7, WO1)
    stamp(g, 16)
    g.e(f"s_waitcnt vmcnt({n1})")
    stamp(g, 17)
    def gl():
        for b in range(3):
            for i in range(4):
                g.e(f"s_add_u32 s{sT2}, s{sT3}, {i*12288 + b*256}")
                g.e(f"buffer_load_dwordx4 {vr(76+16*b+4*i,4)}, v36, {sr(sWS,4)}, s{sT2} offen sc1")
    def red():
        for b in range(3):
            for i in range(4):
                g.e(f"s_waitcnt vmcnt({11-4*b-i})")
                mfma32(g, 128+4*b, 124, 76+16*b+4*i, None if i == 0 else 128+4*b)
        g.e(f"v_add_f32 v13, v128, v132"); g.e(f"v_add_f32 v13, v13, v136"); g.e(f"v_cmp_u_f32 vcc, v13, v13")
    L, Ld = g.uid("kg"), g.uid("kgd")
    gl()
    g.e("s_waitcnt vmcnt(12)")
    lds_signal(g, 2, 12, 13)
    red()
    g.e(f"s_mov_b32 s{sCNT}, 1"); g.e(f"s_cbranch_vccz {Ld}")
    g.lab(L)
    gl(); g.e(f"s_add_u32 s{sCNT}, s{sCNT}, 1"); red()
    g.e(f"s_cmp_gt_u32 s{sCNT}, {SPIN//8}"); g.e(f"s_cbranch_scc1 {Ld}"); g.e(f"s_cbranch_vccnz {L}")
    g.lab(Ld)
    stamp(g, 18); stamp_cnt(g, 40)
    g.e(f"s_mul_i32 s{sT0}, s{sWQ}, 768"); g.e(f"s_add_u32 s{sT0}, s{sT0}, {KVT}")
    g.e(f"v_lshlrev_b32 v12, 4, v{vN}"); g.e(f"v_lshl_add_u32 v12, v{vGQ}, 3, v12"); g.e(f"v_add_u32 v12, s{sT0}, v12")
    for b in range(3):
        g.e(f"v_cvt_pk_bf16_f32 v{16+2*b}, v{128+4*b}, v{129+4*b}"); g.e(f"v_cvt_pk_bf16_f32 v{17+2*b}, v{130+4*b}, v{131+4*b}")
    g.e("s_mov_b32 exec_hi, 0")
    for b in range(3): g.e(f"ds_write_b64 v12, v[{16+2*b}:{17+2*b}] offset:{256*b}")
    g.e("s_mov_b32 exec_hi, -1")
    lds_signal(g, 1, 12, 13)
    for i in range(6): g.e(f"v_mov_b32 v{230+i}, v{140+i}")
    lds_wait(g, 2, 4, 12, 13)
    wo_read_round(g, 0, 7, WO1, 16)
    lds_signal(g, 3, 12, 13)
    lds_wait(g, 3, 8, 12, 13)
    stamp(g, 19)
    global vWOo
    old = vWOo; vWOo = 230
    wo_dma_round(g, 7, 11, WO2)
    vWOo = old
    w1_loads(g)
    g.e("s_waitcnt vmcnt(0)")
    g.e("s_branch L_B2")

def v_stream(g, vm, dma_idx, opts):
    pass1(g, vm, "V", dma_idx)
    g.e(f"v_and_b32 v13, 3, v{vN}")
    for tt in range(2): g.e(f"v_mov_b32 v{110+tt}, v{vSQ(tt)}")
    for q in range(1, 4):
        g.e(f"v_cmp_eq_u32 vcc, {q}, v13"); g.e("s_nop 1")
        for tt in range(2): g.e(f"v_cndmask_b32 v{110+tt}, v{110+tt}, v{vSQ(tt)+q}, vcc")
    g.e(f"s_lshl_b32 s{sT0}, s{sWQ}, 5"); g.e(f"v_add_u32 v12, s{sT0}, v{vN}"); g.e(f"v_lshlrev_b32 v12, 3, v12"); g.e(f"v_add_u32 v12, {STAT}, v12")
    g.e("s_mov_b32 exec_lo, 0x00f0000f"); g.e("s_mov_b32 exec_hi, 0xf0000f00")
    for tt in range(2): g.e(f"ds_write_b32 v12, v{110+tt} offset:{128*tt+4}")
    g.e("s_mov_b64 exec, -1")
    stamp(g, 10)
    g.e("s_waitcnt lgkmcnt(0)"); g.e("s_barrier")
    stamp(g, 11)
    for tt in range(2): g.e(f"ds_read_b64 v[{76+2*tt}:{77+2*tt}], v12 offset:{128*tt}")
    g.e("s_waitcnt lgkmcnt(0)")
    ln_stats(g, 76, 2)
    g.e(f"s_lshl_b32 s{sT0}, s{sWQ}, 5"); g.e(f"v_add_u32 v12, s{sT0}, v{vN}"); g.e(f"v_mul_u32_u24 v12, 80, v12"); g.e(f"v_lshl_add_u32 v12, v{vGQ}, 3, v12")
    ln_apply(g, vACC, 2, vCS, 2, lambda tt, i: 100+4*tt+2*i, 96)
    for tt in range(2):
        for i in range(2): g.e(f"ds_write_b64 v12, v[{100+4*tt+2*i}:{101+4*tt+2*i}] offset:{VIM + 1280*tt + 40*i}")
    lds_signal(g, 0, 12, 13)
    stamp(g, 12)
    vm.wait(g, vm.iwq)
    lds_signal(g, 5, 12, 13)
    qACC = kACC; qCS = kCS
    qWB = lambda b, i: 76 + 12*b + 4*i
    g.e(f"v_mul_u32_u24 v12, 80, v{vRP}"); g.e(f"v_and_b32 v13, 3, v{vLANE}"); g.e(f"v_lshl_add_u32 v12, v13, 3, v12")
    g.e(f"v_add_u32 v12, s{sSH}, v12"); g.e(f"v_add_u32 v{vWa}, {WQ}, v12")
    g.e(f"v_lshlrev_b32 v13, 3, v13"); g.e(f"v_sub_u32 v6, v{vWa}, v13"); g.e("v_add_u32 v6, 64, v6")
    g.e(f"s_mul_i32 s{sT1}, s{sWQ}, 2560"); g.e(f"v_add_u32 v{vW2}, s{sT1}, v{vWa}"); g.e(f"v_add_u32 v7, s{sT1}, v6")
    g.e(f"s_cmp_lt_u32 s{sWQ}, 2"); g.e(f"s_cselect_b32 s{sT1}, 0x3f803f80, 0")
    for r in range(4): g.e(f"v_mov_b32 v{6+r if r < 2 else 12+r}, s{sT1}") if False else None
    lds_wait(g, 5, 4, 12, 13)
    lds_wait(g, 0, 8, 12, 13)
    stamp(g, 48)
    def qr(u, base, off):
        b = u % 3
        b2 = {vWa: 6, vW2: 7, 14: 15}[base]
        return [f"ds_read_b64_tr_b16 {vr(qWB(b,i)+2*h,2)}, v{base if i < 2 else b2} offset:{off + h*640 + (32*i if i < 2 else 0)}" for i in range(3) for h in range(2)]
    for x in qr(0, vWa, 0) + qr(1, vWa, 2560): g.e(x)
    for u in range(18):
        g.e(f"s_waitcnt lgkmcnt({6 if u < 17 else 0})")
        b = u % 3
        mm = [M32(qACC(i,tt), qWB(b,i), vXF(u,tt), None if u == 0 else qACC(i,tt)) for i in range(3) for tt in range(2)]
        if opts.get("qil", "1") == "1": interleave(g, mm, qr(u + 2, vWa, (u + 2)*2560) if u + 2 < 18 else [])
        else:
            for x in mm: g.e(x)
            for x in (qr(u + 2, vWa, (u + 2)*2560) if u + 2 < 18 else []): g.e(x)
    stamp(g, 13)
    for r in range(4): g.e(f"v_mov_b32 v{112+r}, s{sT1}")
    for x in qr(0, vW2, 0) + qr(1, vW2, 4*2560): g.e(x)
    for i5 in range(5):
        g.e(f"s_waitcnt lgkmcnt({6 if i5 < 4 else 0})")
        b = i5 % 3
        mm = [M32(qCS(i), qWB(b,i), vONES if i5 < 4 else 112, None if i5 == 0 else qCS(i)) for i in range(3)]
        nxt = i5 + 2
        fl = []
        if nxt < 5:
            fl = qr(nxt, vW2, nxt*4*2560 if nxt < 4 else 0)
            if nxt == 4: fl = [f"v_min_u32 v13, {WQ + 17*2560 + 4000}, v{vW2}"] if False else qr(nxt, 14, 0)
        if nxt == 4:
            g.e(f"s_add_u32 s{sT2}, s{sWQ}, 16"); g.e(f"s_min_u32 s{sT2}, s{sT2}, 17"); g.e(f"s_mul_i32 s{sT2}, s{sT2}, 2560"); g.e(f"v_add_u32 v14, s{sT2}, v{vWa}"); g.e(f"v_add_u32 v15, s{sT2}, v6")
        interleave(g, mm, fl)
    g.e(f"s_mul_i32 s{sT0}, s{sWQ}, 192"); g.e(f"v_lshlrev_b32 v13, 4, v{vGQ}"); g.e(f"v_add_u32 v13, {CSQ}, v13"); g.e(f"v_add_u32 v14, s{sT0}, v13")
    g.e("s_mov_b32 exec_lo, 0x00010001"); g.e("s_mov_b32 exec_hi, 0x00010001")
    for i in range(3): g.e(f"ds_write_b128 v14, {vr(qCS(i),4)} offset:{64*i}")
    g.e("s_mov_b64 exec, -1")
    lds_signal(g, 4, 12, 14)
    for k in range(40): g.e(f"v_mov_b32 v{204+k}, 0")
    lds_wait(g, 4, 4, 12, 14)
    CB = (244, 76, 120, 132)
    for w in range(4):
        for i in range(3): g.e(f"ds_read_b128 {vr(CB[w]+4*i,4)}, v13 offset:{192*w + 64*i}")
    g.e("s_waitcnt lgkmcnt(0)")
    for k in range(0, 12, 2):
        g.e(f"v_pk_add_f32 v[{244+k}:{245+k}], v[{244+k}:{245+k}], v[{76+k}:{77+k}]"); g.e(f"v_pk_add_f32 v[{120+k}:{121+k}], v[{120+k}:{121+k}], v[{132+k}:{133+k}]")
    for k in range(0, 12, 2): g.e(f"v_pk_add_f32 v[{244+k}:{245+k}], v[{244+k}:{245+k}], v[{120+k}:{121+k}]")
    if opts.get("dbgcs"):
        g.e(f"s_lshl_b32 s{sT0}, s2, 15"); g.e(f"s_lshl_b32 s{sT1}, s{sWQ}, 13"); g.e(f"s_add_u32 s{sT0}, s{sT0}, s{sT1}"); g.e(f"s_add_u32 s{sT0}, s{sT0}, {DBGA}")
        g.e(f"v_lshlrev_b32 v12, 7, v{vLANE}")
        for k in range(3): g.e(f"buffer_store_dwordx4 v[{160+4*k}:{163+4*k}], v12, {sr(sWS,4)}, s{sT0} offen offset:{16*k}")
        g.e(f"buffer_store_dwordx4 v[2:5], v12, {sr(sWS,4)}, s{sT0} offen offset:48")
        for k in range(4): g.e(f"buffer_store_dwordx4 v[{16+4*k}:{19+4*k}], v12, {sr(sWS,4)}, s{sT0} offen offset:{64+16*k}")
        g.e("s_waitcnt vmcnt(0)")
    KB = 96
    ln_apply(g, qACC, 3, lambda i: 244+4*i, 2, lambda tt, i: KB+6*tt+2*i, 108, scalar=opts.get('lns','0')=='1')
    if opts.get("vw") == "A": g.e("s_waitcnt vmcnt(0)")
    if opts.get("dbgk"):
        g.e(f"s_lshl_b32 s{sT2}, s2, 16"); g.e(f"s_lshl_b32 s{sT3}, s{sWQ}, 14"); g.e(f"s_add_u32 s{sT2}, s{sT2}, s{sT3}"); g.e(f"s_add_u32 s{sT2}, s{sT2}, {DBGA}")
        g.e(f"v_lshlrev_b32 v14, 8, v{vLANE}"); g.e("s_nop 3")
        for k in range(3): g.e(f"buffer_store_dwordx4 v[{96+4*k}:{99+4*k}], v14, {sr(sWS,4)}, s{sT2} offen offset:{16*k}")
        for k in range(3): g.e(f"buffer_store_dwordx4 v[{160+4*k}:{163+4*k}], v14, {sr(sWS,4)}, s{sT2} offen offset:{80+16*k}")
        g.e(f"buffer_store_dwordx4 v[2:5], v14, {sr(sWS,4)}, s{sT2} offen offset:160")
        g.e("s_nop 3")
    stage2(g, KB, qACC)
    if opts.get("vw") == "A2": g.e("s_waitcnt vmcnt(0)")
    softmax36(g, 16, 76, 94, 112)
    if opts.get("vw") == "B": g.e("s_waitcnt vmcnt(0)")
    stamp(g, 14)
    g.e("v_mov_b32 v34, 0"); g.e("v_mov_b32 v35, 0")
    g.e(f"v_lshrrev_b32 v12, 1, v{vGQ}"); g.e(f"v_mul_u32_u24 v12, 19, v12"); g.e(f"v_and_b32 v13, 3, v{vN}"); g.e(f"v_add_u32 v12, v12, v13")
    g.e(f"v_mul_u32_u24 v12, 80, v12"); g.e(f"v_add_u32 v36, {KVT}, v12")
    AF = lambda i, c: 204 + 20*(i & 1) + 4*c
    stamp(g, 15)
    lds_wait(g, 1, 4, 13, 14)
    stamp(g, 16)
    DO = lambda i: 76 + 4*i
    def ard(i):
        g.e("s_mov_b32 exec_lo, 0x00f0000f"); g.e("s_mov_b32 exec_hi, 0xf0000f00")
        for c in range(5): g.e(f"ds_read_b128 {vr(AF(i,c),4)}, v36 offset:{320*i + 16*c}")
        g.e("s_mov_b64 exec, -1")
    ard(0); ard(1)
    for i in range(5):
        g.e(f"s_waitcnt lgkmcnt({5 if i < 4 else 0})")
        for c in range(5): mfma32(g, DO(i), AF(i,c), 16+4*c, None if c == 0 else DO(i))
        if i + 2 < 5: ard(i + 2)
    g.e(f"s_lshl_b32 s{sT0}, s{sTT}, 3"); g.e(f"s_lshl_b32 s{sT1}, s{sWQ}, 1"); g.e(f"s_add_u32 s{sT0}, s{sT0}, s{sT1}"); g.e(f"s_mul_i32 s{sT0}, s{sT0}, 18432")
    g.e(f"s_add_u32 s{sT0}, s{sT0}, {OWS}"); g.e(f"s_lshl_b32 s{sT1}, s{sHP}, 10"); g.e(f"s_add_u32 s{sT1}, s{sT1}, s{sT0}")
    g.e(f"v_and_b32 v12, 1, v{vGQ}"); g.e(f"v_mul_u32_u24 v12, 18432, v12")
    g.e(f"v_lshrrev_b32 v13, 1, v{vGQ}"); g.e(f"v_lshlrev_b32 v13, 9, v13"); g.e(f"v_lshl_add_u32 v13, v{vN}, 4, v13"); g.e(f"v_add_u32 v13, v12, v13")
    if opts.get("vw") == "C": g.e("s_waitcnt vmcnt(0)")
    if opts.get("dbgo"):
        g.e(f"s_lshl_b32 s{sT2}, s2, 16"); g.e(f"s_lshl_b32 s{sT3}, s{sWQ}, 14"); g.e(f"s_add_u32 s{sT2}, s{sT2}, s{sT3}"); g.e(f"s_add_u32 s{sT2}, s{sT2}, {DBGA}")
        g.e(f"v_lshlrev_b32 v14, 8, v{vLANE}"); g.e("s_nop 7")
        for k in range(5): g.e(f"buffer_store_dwordx4 v[{16+4*k}:{19+4*k}], v14, {sr(sWS,4)}, s{sT2} offen offset:{16*k}")
        for k in range(5): g.e(f"buffer_store_dwordx4 v[{76+4*k}:{79+4*k}], v14, {sr(sWS,4)}, s{sT2} offen offset:{80+16*k}")
        for k in range(4): g.e(f"buffer_store_dwordx4 v[{56+4*k}:{59+4*k}], v14, {sr(sWS,4)}, s{sT2} offen offset:{160+16*k}")
        g.e("s_nop 3")
    g.e("v_add_f32 v94, 0x358637bd, v94"); g.e("v_rcp_f32 v94, v94")
    for d in range(0, 18, 2): g.e(f"v_pk_mul_f32 v[{76+d}:{77+d}], v[{76+d}:{77+d}], v[94:95] op_sel_hi:[1,0]")
    for i in range(9): g.e(f"v_cvt_pk_bf16_f32 v{100+i}, v{76+2*i}, v{77+2*i}")
    g.e("v_mov_b32 v110, v108"); g.e("v_mov_b32 v109, 0")
    g.e("v_permlane32_swap_b32 v109, v110")
    g.e(f"v_cmp_lt_u32 vcc, 31, v{vLANE}")
    S1 = [(100,109),(101,100),(102,101),(103,102)]; S2 = [(104,103),(105,104),(106,105),(107,106)]
    g.e("s_nop 1")
    for k,(a,b) in enumerate(S1): g.e(f"v_cndmask_b32 v{16+k}, v{a}, v{b}, vcc")
    for k,(a,b) in enumerate(S2): g.e(f"v_cndmask_b32 v{20+k}, v{a}, v{b}, vcc")
    g.e(f"buffer_store_dwordx4 v[16:19], v13, {sr(sWS,4)}, s{sT1} offen sc1")
    g.e(f"buffer_store_dwordx4 v[20:23], v13, {sr(sWS,4)}, s{sT1} offen offset:256 sc1")
    g.e(f"s_lshl_b32 s{sT1}, s{sHP}, 7"); g.e(f"s_add_u32 s{sT1}, s{sT1}, s{sT0}"); g.e(f"s_add_u32 s{sT1}, s{sT1}, 16384")
    g.e(f"v_lshl_add_u32 v13, v{vN}, 3, v12"); g.e("v_mov_b32 v24, v107"); g.e("v_mov_b32 v25, v108")
    g.e("s_mov_b32 exec_lo, 0")
    g.e(f"buffer_store_dwordx2 v[24:25], v13, {sr(sWS,4)}, s{sT1} offen sc1")
    g.e("s_mov_b32 exec_lo, -1")
    stamp(g, 17)
    lds_wait(g, 2, 4, 12, 13)
    wo_read_round(g, 0, 7, WO1, 28)
    lds_signal(g, 3, 12, 13)
    stamp(g, 19)
    g.e("s_waitcnt vmcnt(0)")
    g.e(f"s_mul_i32 s{sT1}, s{sTG}, 36864"); g.e(f"s_add_u32 s{sT1}, s{sT1}, {OWS}"); g.e(f"s_lshl_b32 s{sT2}, s{sWQ}, 10"); g.e(f"s_add_u32 s{sT1}, s{sT1}, s{sT2}")
    g.e(f"v_lshlrev_b32 v12, 4, v{vLANE}")
    def ld():
        for t in range(9):
            if t and t % 1 == 0: g.e(f"s_add_u32 s{sT2}, s{sT1}, {4096*t}")
            g.e(f"buffer_load_dwordx4 {vr(76+4*t,4)}, v12, {sr(sWS,4)}, s{sT1 if t == 0 else sT2} offen sc1")
    poll_loop(g, ld, lambda: maxchk(g, range(76, 112), 13), SPIN//4)
    stamp(g, 22); stamp_cnt(g, 41)
    g.e(f"s_lshl_b32 s{sT2}, s{sWQ}, 10"); g.e(f"v_add_u32 v13, s{sT2}, v12"); g.e(f"v_add_u32 v13, {OIM}, v13")
    for t in range(9): g.e(f"ds_write_b128 v13, {vr(76+4*t,4)} offset:{4096*t}")

P9 = 73728; SP = 90112; OUTB = 94208; RED = 103424; MR = 111616; RK = 111872; XS = OIM + 8192
CIM = 0
sF0 = sROT
sROLE = 2

def rowsum64(g, v, t):
    for k in (8, 4, 2, 1): g.e(f"v_add_f32_dpp v{v}, v{v}, v{v} row_ror:{k} row_mask:0xf bank_mask:0xf")
    g.e(f"v_mov_b32 v{t}, v{v}"); g.e(f"v_permlane16_swap_b32 v{v}, v{t}"); g.e(f"v_add_f32 v{v}, v{v}, v{t}")
    g.e(f"v_mov_b32 v{t}, v{v}"); g.e(f"v_permlane32_swap_b32 v{v}, v{t}"); g.e(f"v_add_f32 v{v}, v{v}, v{t}")

def cd_dma_setup(g):
    LD, LN, LE = g.uid("sd"), g.uid("sn"), g.uid("se")
    g.e(f"s_cmp_ge_u32 s{sJ}, 18"); g.e(f"s_cbranch_scc1 {LD}")
    g.e(f"s_mul_i32 s{sF0}, s{sXCD}, 576"); g.e(f"s_lshl_b32 s{sT0}, s{sJ}, 5"); g.e(f"s_add_u32 s{sF0}, s{sF0}, s{sT0}")
    g.e(f"v_lshrrev_b32 v12, 2, v{vLANE}"); swap23(g, 30, 12, 13); g.e("v_mul_u32_u24 v30, 9216, v30")
    g.e(f"v_and_b32 v13, 3, v{vLANE}"); g.e("v_lshl_add_u32 v30, v13, 4, v30"); g.e(f"s_lshl_b32 s{sT0}, s{sF0}, 1"); g.e(f"v_add_u32 v30, s{sT0}, v30")
    g.e(f"s_branch {LE}")
    g.lab(LD)
    g.e(f"v_lshrrev_b32 v12, 3, v{vLANE}"); g.e("v_and_b32 v13, 3, v12"); g.e("v_lshrrev_b32 v14, 2, v12"); g.e("v_lshl_add_u32 v13, v14, 3, v13"); g.e("v_mul_u32_u24 v30, 1152, v13")
    g.e("v_bfe_u32 v13, v12, 1, 2"); g.e("v_lshlrev_b32 v13, 1, v13"); g.e(f"v_and_b32 v14, 7, v{vLANE}"); g.e("v_xor_b32 v13, v13, v14"); g.e("v_lshl_add_u32 v30, v13, 4, v30")
    g.e(f"s_sub_u32 s{sF0}, s{sJ}, 18"); g.e(f"s_lshl_b32 s{sT0}, s{sF0}, 7"); g.e(f"v_add_u32 v30, s{sT0}, v30")
    g.lab(LE)

def cd_dma_all(g):
    LD, LN = g.uid("dd"), g.uid("dn")
    g.e(f"s_sub_u32 s{sT3}, s{sWAVE}, 2"); g.e(f"s_mul_i32 s{sT3}, s{sT3}, 12")
    g.e(f"s_cmp_ge_u32 s{sJ}, 18"); g.e(f"s_cbranch_scc1 {LD}")
    Lu = g.uid("du")
    g.e(f"s_cmp_ge_u32 s{sWAVE}, 5"); g.e(f"s_cbranch_scc1 {Lu}")
    g.e(f"s_lshl_b32 s{sT2}, s{sT3}, 10"); g.e(f"s_mul_i32 s{sT0}, s{sT3}, {16*9216}")
    for i in range(12):
        g.e(f"s_add_u32 m0, s{sT2}, {CIM + 1024*i}"); g.e("s_nop 0"); g.e(f"buffer_load_dwordx4 v30, {sr(sG,4)}, s{sT0} offen lds"); g.e(f"s_add_u32 s{sT0}, s{sT0}, {16*9216}")
    g.e(f"s_branch {LN}")
    g.lab(Lu)
    g.e(f"s_sub_u32 s{sT3}, s{sT3}, 36"); g.e(f"s_lshl_b32 s{sT2}, s{sT3}, 10"); g.e(f"s_mul_i32 s{sT0}, s{sT3}, {16*9216}")
    for i in range(12):
        g.e(f"s_add_u32 m0, s{sT2}, {CIM + 36864 + 1024*i}"); g.e("s_nop 0"); g.e(f"buffer_load_dwordx4 v30, {sr(sU,4)}, s{sT0} offen lds"); g.e(f"s_add_u32 s{sT0}, s{sT0}, {16*9216}")
    g.e(f"s_branch {LN}")
    g.lab(LD)
    g.e(f"s_cmp_ge_u32 s{sJ}, 27"); g.e(f"s_cbranch_scc1 {LN}")
    g.e(f"s_lshl_b32 s{sT2}, s{sT3}, 10"); g.e(f"s_lshl_b32 s{sT0}, s{sT3}, 3"); g.e(f"s_mul_i32 s{sT1}, s{sXCD}, 576"); g.e(f"s_add_u32 s{sT0}, s{sT0}, s{sT1}"); g.e(f"s_mul_i32 s{sT0}, s{sT0}, 1152")
    for i in range(12):
        k0 = 4*(i & 1) + 16*((i >> 1) & 1) + 32*(i >> 2)
        g.e(f"s_add_u32 m0, s{sT2}, {CIM + 1024*i}"); g.e(f"s_add_u32 s{sT1}, s{sT0}, {k0*1152}"); g.e(f"buffer_load_dwordx4 v30, {sr(sDN,4)}, s{sT1} offen lds")
    g.lab(LN)

def c_dma(g):
    g.e(f"s_cmp_ge_u32 s{sWAVE}, 4"); g.e(f"s_cselect_b32 s68, s{sU}, s{sG}"); g.e(f"s_cselect_b32 s69, s{sU+1}, s{sG+1}"); g.e(f"s_mov_b32 s70, 5308416"); g.e(f"s_mov_b32 s71, 0x20000")
    g.e(f"s_cselect_b32 s72, {CIM + 36864}, {CIM}"); g.e(f"s_mul_i32 s{sT3}, s{sWQ}, 9"); g.e(f"s_lshl_b32 s73, s{sT3}, 10"); g.e(f"s_add_u32 s72, s72, s73"); g.e(f"s_mul_i32 s73, s{sT3}, {16*9216}")
    for i in range(9):
        g.e(f"s_add_u32 m0, s72, {1024*i}"); g.e(f"s_add_u32 s74, s73, {i*16*9216}"); g.e("buffer_load_dwordx4 v30, s[68:71], s74 offen " + g3.NTC + " lds")
def d_dma(g):
    for i in range(9):
        g.e(f"s_mul_i32 s{sT1}, s{sWAVE}, 9"); g.e(f"s_add_u32 s{sT1}, s{sT1}, {i}")
        g.e(f"s_lshl_b32 s{sT2}, s{sT1}, 10"); g.e(f"s_add_u32 m0, s{sT2}, {CIM}")
        g.e(f"s_and_b32 s{sT0}, s{sT1}, 1"); g.e(f"s_lshl_b32 s{sT0}, s{sT0}, 2"); g.e(f"s_and_b32 s{sT2}, s{sT1}, 2"); g.e(f"s_lshl_b32 s{sT2}, s{sT2}, 3"); g.e(f"s_add_u32 s{sT0}, s{sT0}, s{sT2}")
        g.e(f"s_lshr_b32 s{sT2}, s{sT1}, 2"); g.e(f"s_lshl_b32 s{sT2}, s{sT2}, 5"); g.e(f"s_add_u32 s{sT0}, s{sT0}, s{sT2}")
        g.e(f"s_mul_i32 s{sT2}, s{sXCD}, 576"); g.e(f"s_add_u32 s{sT0}, s{sT0}, s{sT2}"); g.e(f"s_mul_i32 s{sT0}, s{sT0}, 1152")
        g.e(f"buffer_load_dwordx4 v30, {sr(sDN,4)}, s{sT0} offen {g3.NTC} lds")

def moe_touch(g, nt):
    g.e(f"s_mul_i32 s{sT0}, s{sJ}, 162"); g.e(f"s_mul_i32 s{sT1}, s{sWQ}, 41"); g.e(f"s_add_u32 s{sT0}, s{sT0}, s{sT1}")
    g.e(f"v_min_u32 v12, 40, v{vLANE}"); g.e(f"v_add_u32 v12, s{sT0}, v12"); g.e("v_min_u32 v12, 5183, v12")
    g.e("v_mul_u32_u24 v13, 7282, v12"); g.e("v_lshrrev_b32 v13, 16, v13"); g.e("v_mul_u32_u24 v14, 9, v13"); g.e("v_sub_u32 v14, v12, v14")
    g.e("v_mul_u32_u24 v13, 9216, v13"); g.e("v_lshl_add_u32 v13, v14, 7, v13")
    g.e(f"s_cmp_ge_u32 s{sWAVE}, 4"); g.e(f"s_cselect_b32 s68, s{sU}, s{sG}"); g.e(f"s_cselect_b32 s69, s{sU+1}, s{sG+1}"); g.e(f"s_mov_b32 s70, 5308416"); g.e(f"s_mov_b32 s71, 0x20000")
    g.e(f"s_mul_i32 s{sT0}, s{sXCD}, 1152"); g.e(f"s_mov_b32 m0, {g3.JUNK}")
    g.e("s_mov_b32 exec_hi, 0x1ff")
    g.e(f"buffer_load_dword v13, s[68:71], s{sT0} offen {nt} lds")
    g.e("s_mov_b32 exec_hi, -1")

def phase_B2(g, opts):
    g.lab("L_B2")
    g.e("s_waitcnt lgkmcnt(0)"); g.e("s_barrier")
    stamp(g, 23)
    wo_read_round(g, 7, 11, WO2, 16)
    g.e("v_mov_b32 v220, 0")
    for r in range(8): g.e(f"v_dot2c_f32_bf16 v220, v{212+r}, v{vONES}")
    rowsum64(g, 220, 221)
    cd_dma_setup(g)
    vB, vBL = 21, 22
    g.e(f"v_lshlrev_b32 v{vB}, 4, v{vLANE}"); g.e(f"v_add_u32 v{vB}, {OIM}, v{vB}")
    g.e(f"v_lshlrev_b32 v{vBL}, 8, v{vGQ}"); g.e(f"v_lshl_add_u32 v{vBL}, v{vN}, 3, v{vBL}"); g.e(f"v_add_u32 v{vBL}, {OIM + 16384}, v{vBL}")
    BB = lambda b, tt: 76 + 8*b + 4*tt
    def breads(s, b, base=vB, basel=vBL, dyn=False):
        n = 0
        for tt in range(2):
            if s < 16: g.e(f"ds_read_b128 {vr(BB(b,tt),4)}, v{base} offset:{tt*18432 + (0 if dyn else s*1024)}"); n += 1
            else:
                u = 0 if dyn else s - 16
                g.e(f"ds_read_b64 {vr(BB(b,tt),2)}, v{basel} offset:{tt*18432 + u*1024}"); g.e(f"ds_read_b64 {vr(BB(b,tt)+2,2)}, v{basel} offset:{tt*18432 + u*1024 + 128}"); n += 2
        return n
    D9 = lambda tt: 224 + 4*tt
    DM = lambda tt: 108 + 4*tt
    g.e(f"s_lshl_b32 s{sT3}, s{sWAVE}, 10"); g.e(f"v_add_u32 v23, s{sT3}, v{vB}")
    breads(0, 0, base=23, dyn=True); g.e("v_add_u32 v24, 8192, v23"); breads(0, 1, base=24, dyn=True)
    g.e(f"v_add_u32 v25, s{sT3}, v{vBL}"); breads(16, 2, basel=25, dyn=True)
    g.e("s_waitcnt lgkmcnt(0)"); g.e("s_barrier")
    stamp(g, 21)
    small_loads(g)
    if opts.get("pf", "1") == "1": moe_touch(g, opts.get("pfnt", "nt"))
    for tt in range(2): mfma32(g, D9(tt), A9(0), BB(0,tt), None)
    for tt in range(2): mfma32(g, D9(tt), A9(1), BB(1,tt), D9(tt))
    L = g.uid("n9"); g.e(f"s_cmp_lt_u32 s{sWAVE}, 2"); g.e(f"s_cbranch_scc0 {L}")
    for tt in range(2): mfma32(g, D9(tt), A9(2), BB(2,tt), D9(tt))
    g.lab(L)
    def gemm2(with_dma):
        dmas = []
        if with_dma:
            for role in ("C", "D"): pass
        ops = []
        def rdl(s):
            with Cap(g) as c: n = breads(s, (s + 3) & 3)
            ops.extend([s]*n); return c.lines
        for s in range(3):
            for x in rdl(s): g.e(x)
        for s in range(18):
            fl = rdl(s + 3) if s + 3 < 18 else []
            nyoung = len(fl)
            last = max(i for i, t in enumerate(ops) if t == s)
            g.e(f"s_waitcnt lgkmcnt({min(len(ops) - nyoung - 1 - last, 15)})")
            mm = [M32(DM(tt), AW(s), BB((s + 3) & 3, tt), None if s == 0 else DM(tt)) for tt in range(2)]
            interleave(g, mm, fl)
            if with_dma and s < len(with_dma):
                for x in with_dma[s]: g.e(x)
            if s == 4:
                g.e(f"s_lshl_b32 s{sT0}, s{sWAVE}, 11"); g.e(f"v_lshlrev_b32 v23, 4, v{vLANE}"); g.e(f"v_add_u32 v23, s{sT0}, v23"); g.e(f"v_add_u32 v23, {P9}, v23")
                g.e(f"ds_write_b128 v23, {vr(D9(0),4)}"); g.e(f"ds_write_b128 v23, {vr(D9(1),4)} offset:1024"); ops.extend(["w", "w"])
        g.e(f"s_waitcnt vmcnt({1 if opts.get('pf', '1') == '1' else 0})")
    gemm2(None)
    g.e("s_waitcnt lgkmcnt(0)"); g.e("s_barrier")
    stamp(g, 24)
    g.e(f"s_and_b32 s{sT0}, s{sWAVE}, 1"); g.e(f"s_lshl_b32 s{sT0}, s{sT0}, 10"); g.e(f"s_lshr_b32 s{sT1}, s{sWAVE}, 1"); g.e(f"s_lshl_b32 s{sT1}, s{sT1}, 2"); g.e(f"s_add_u32 s{sT0}, s{sT0}, s{sT1}")
    g.e(f"v_lshlrev_b32 v23, 4, v{vLANE}"); g.e(f"v_add_u32 v23, s{sT0}, v23"); g.e(f"v_add_u32 v23, {P9}, v23")
    for w in range(8): g.e(f"ds_read_b32 v{76+w}, v23 offset:{2048*w}")
    for tt in range(2):
        for p_ in range(2):
            x = 204 + 2*tt + p_
            g.e(f"v_lshlrev_b32 v12, 16, v{x}"); g.e(f"v_and_b32 v13, 0xffff0000, v{x}")
            g.e(f"v_add_f32 v{DM(tt)+2*p_}, v{DM(tt)+2*p_}, v12"); g.e(f"v_add_f32 v{DM(tt)+2*p_+1}, v{DM(tt)+2*p_+1}, v13")
    for p_ in range(2):
        g.e(f"v_lshlrev_b32 v{84+2*p_}, 16, v{208+p_}"); g.e(f"v_and_b32 v{85+2*p_}, 0xffff0000, v{208+p_}")
    g.e("v_lshlrev_b32 v88, 16, v211"); g.e("v_lshlrev_b32 v116, 16, v210")
    for tt in range(2):
        h = DM(tt); s1, s2, s3 = 90+3*tt, 91+3*tt, 92+3*tt
        g.e(f"v_add_f32 v{s1}, v{h}, v{h+1}"); g.e(f"v_mul_f32 v{s2}, v{h}, v{h}"); g.e(f"v_mul_f32 v{s3}, v{h}, v84")
        g.e(f"v_add_f32 v{s1}, v{s1}, v{h+2}"); g.e(f"v_fmac_f32 v{s2}, v{h+1}, v{h+1}"); g.e(f"v_fmac_f32 v{s3}, v{h+1}, v85")
        g.e(f"v_add_f32 v{s1}, v{s1}, v{h+3}"); g.e(f"v_fmac_f32 v{s2}, v{h+2}, v{h+2}"); g.e(f"v_fmac_f32 v{s3}, v{h+2}, v86")
        g.e(f"v_fmac_f32 v{s2}, v{h+3}, v{h+3}"); g.e(f"v_fmac_f32 v{s3}, v{h+3}, v87")
    g.e("s_waitcnt lgkmcnt(0)")
    g.e("v_add_f32 v76, v76, v77"); g.e("v_add_f32 v78, v78, v79"); g.e("v_add_f32 v80, v80, v81"); g.e("v_add_f32 v82, v82, v83")
    g.e("v_add_f32 v76, v76, v78"); g.e("v_add_f32 v80, v80, v82"); g.e("v_add_f32 v116, v116, v76"); g.e("v_add_f32 v116, v116, v80")
    g.e(f"s_and_b32 s{sT0}, s{sWAVE}, 1"); g.e(f"s_cmp_eq_u32 s{sT0}, 0"); g.e(f"s_cselect_b32 s{sT1}, 1.0, 0"); g.e(f"s_cselect_b32 s{sT2}, 0, 1.0")
    for tt, sel in ((0, sT1), (1, sT2)):
        g.e(f"v_mul_f32 v12, s{sel}, v116")
        g.e(f"v_add_f32 v{90+3*tt}, v{90+3*tt}, v12"); g.e(f"v_fmac_f32 v{91+3*tt}, v12, v116"); g.e(f"v_fmac_f32 v{92+3*tt}, v12, v88")
    g.e("v_mov_b32 v96, 0"); g.e("v_mov_b32 v97, 0")
    for (a, b) in ((90, 91), (92, 96), (93, 94), (95, 97)):
        g.e(f"v_permlane16_swap_b32 v{a}, v{b}")
    for (a, b) in ((90, 91), (92, 96), (93, 94), (95, 97)):
        g.e(f"v_add_f32 v{a}, v{a}, v{b}")
    for (a, b) in ((90, 92), (93, 95)): g.e(f"v_permlane32_swap_b32 v{a}, v{b}")
    for (a, b) in ((90, 92), (93, 95)): g.e(f"v_add_f32 v{a}, v{a}, v{b}")
    g.e(f"s_lshl_b32 s{sT0}, s{sWAVE}, 9"); g.e(f"v_lshlrev_b32 v12, 2, v{vLANE}"); g.e(f"v_add_u32 v13, s{sT0}, v12"); g.e(f"v_add_u32 v13, {SP}, v13")
    g.e("ds_write_b32 v13, v90"); g.e("ds_write_b32 v13, v93 offset:256")
    g.e("s_waitcnt lgkmcnt(0)"); g.e("s_barrier")
    stamp(g, 25)
    g.e(f"s_lshl_b32 s{sT3}, s{sTG}, 11"); g.e(f"s_add_u32 s{sT3}, s{sT3}, {STP}")
    L = g.uid("sp"); g.e(f"s_cmp_lt_u32 s{sWAVE}, 2"); g.e(f"s_cbranch_scc0 {L}")
    g.e(f"s_lshl_b32 s{sT0}, s{sWAVE}, 8"); g.e(f"v_add_u32 v13, s{sT0}, v12"); g.e(f"v_add_u32 v13, {SP}, v13")
    for w in range(8): g.e(f"ds_read_b32 v{76+w}, v13 offset:{512*w}")
    g.e(f"v_lshlrev_b32 v14, 4, v{vN}"); g.e(f"v_lshl_add_u32 v14, v{vGQ}, 2, v14")
    g.e(f"s_lshl_b32 s{sT2}, s{sCG}, 9"); g.e(f"s_add_u32 s{sT2}, s{sT2}, s{sT3}"); g.e(f"s_add_u32 s{sT2}, s{sT2}, s{sT0}")
    g.e("s_waitcnt lgkmcnt(0)")
    g.e("v_add_f32 v76, v76, v77"); g.e("v_add_f32 v78, v78, v79"); g.e("v_add_f32 v80, v80, v81"); g.e("v_add_f32 v82, v82, v83")
    g.e("v_add_f32 v76, v76, v78"); g.e("v_add_f32 v80, v80, v82"); g.e("v_add_f32 v76, v76, v80")
    g.e(f"buffer_store_dword v76, v14, {sr(sWS,4)}, s{sT2} offen sc1")
    g.lab(L)
    Lw0, Lw27, Lj = g.uid("w0"), g.uid("w27"), g.uid("wj")
    g.e(f"s_cmp_ge_u32 s{sWAVE}, 2"); g.e(f"s_cbranch_scc1 {Lw27}")
    g.e(f"s_cmp_eq_u32 s{sWAVE}, 0"); g.e(f"s_cbranch_scc0 {Lj}")
    g.e(f"v_and_b32 v12, 31, v{vLANE}"); g.e(f"v_lshlrev_b32 v12, 4, v12")
    def ld():
        for c in range(4): g.e(f"buffer_load_dwordx4 {vr(76+4*c,4)}, v12, {sr(sWS,4)}, s{sT3} offen offset:{512*c} sc1")
    poll_loop(g, ld, lambda: maxchk(g, [76,77,78,80,81,82,84,85,86,88,89,90], 13), SPIN//4)
    stamp(g, 26); stamp_cnt(g, 42)
    for q in range(3):
        g.e(f"v_add_f32 v{76+q}, v{76+q}, v{80+q}"); g.e(f"v_add_f32 v{84+q}, v{84+q}, v{88+q}")
    for q in range(3): g.e(f"v_add_f32 v{76+q}, v{76+q}, v{84+q}")
    g.e("v_mul_f32 v76, 0x3ae38e39, v76"); g.e("v_mul_f32 v77, 0x3ae38e39, v77"); g.e("v_fma_f32 v77, -v76, v76, v77"); g.e("v_max_f32 v77, 0, v77")
    g.e("v_add_f32 v77, 0x3727c5ac, v77"); g.e("v_rsq_f32 v77, v77")
    g.e("v_fma_f32 v78, -v76, v220, v78"); g.e("v_mul_f32 v78, v78, v77")
    g.e(f"s_lshl_b32 s{sT1}, s{sTG}, 7"); g.e(f"s_add_u32 s{sT2}, s{sT1}, {RWS}"); g.e(f"v_and_b32 v12, 31, v{vLANE}"); g.e("v_lshlrev_b32 v13, 2, v12"); g.e("v_lshlrev_b32 v12, 3, v12")
    g.e("s_mov_b32 exec_hi, 0")
    g.e(f"buffer_store_dword v78, v13, {sr(sWS,4)}, s{sT2} offen sc1")
    g.e(f"v_add_u32 v14, {MR}, v12"); g.e("ds_write_b64 v14, v[76:77]")
    g.e("v_add_f32 v79, 1.0, v77"); g.e("v_rcp_f32 v79, v79"); g.e("v_mul_f32 v80, v77, v79"); g.e("v_mul_f32 v81, v76, v80"); g.e("v_sub_f32 v81, 0, v81")
    g.e(f"s_lshl_b32 s{sT1}, s{sTG}, 8"); g.e(f"s_add_u32 s{sT2}, s{sT1}, {MRS}")
    g.e(f"buffer_store_dwordx2 v[80:81], v12, {sr(sWS,4)}, s{sT2} offen sc1")
    g.e("s_mov_b32 exec_hi, -1")
    stamp(g, 27)
    g.e(f"s_branch {Lj}")
    g.lab(Lw27)
    g.lab(Lj)
    g.e("s_waitcnt lgkmcnt(0)"); g.e("s_barrier")
    g.e(f"v_lshlrev_b32 v12, 3, v{vN}"); g.e(f"v_add_u32 v12, {MR}, v12")
    g.e("ds_read_b64 v[76:77], v12"); g.e("ds_read_b64 v[82:83], v12 offset:128"); g.e("s_waitcnt lgkmcnt(0)")
    for tt, (mm, rr) in enumerate(((76, 77), (82, 83))):
        for r in range(4):
            h = DM(tt) + r
            g.e(f"v_sub_f32 v{90+r}, v{h}, v{mm}")
        for r in range(4):
            h = DM(tt) + r
            g.e(f"v_fma_f32 v{h}, v{90+r}, v{rr}, v{h}")
        g.e(f"v_cvt_pk_bf16_f32 v{84+2*tt}, v{DM(tt)}, v{DM(tt)+1}"); g.e(f"v_cvt_pk_bf16_f32 v{85+2*tt}, v{DM(tt)+2}, v{DM(tt)+3}")
    g.e(f"s_and_b32 s{sT0}, s{sWAVE}, 1"); g.e(f"s_cmp_eq_u32 s{sT0}, 0"); g.e("s_cselect_b64 vcc, -1, 0"); g.e("s_nop 1")
    g.e("v_cndmask_b32 v12, v82, v76, vcc"); g.e("v_cndmask_b32 v13, v83, v77, vcc")
    g.e("v_sub_f32 v12, v116, v12"); g.e("v_fma_f32 v116, v12, v13, v116"); g.e("v_cvt_pk_bf16_f32 v116, v116, v116")
    g.e(f"v_mul_u32_u24 v12, 288, v{vN}"); g.e(f"v_lshl_add_u32 v12, v{vGQ}, 3, v12"); g.e(f"v_add_u32 v12, {OUTB}, v12")
    g.e(f"s_lshl_b32 s{sT1}, s{sWAVE}, 5"); g.e(f"v_add_u32 v13, s{sT1}, v12")
    g.e("ds_write_b64 v13, v[84:85]"); g.e(f"ds_write_b64 v13, v[86:87] offset:{16*288}")
    g.e(f"s_mul_i32 s{sT0}, s{sT0}, {16*288}"); g.e(f"s_lshr_b32 s{sT1}, s{sWAVE}, 1"); g.e(f"s_lshl_b32 s{sT1}, s{sT1}, 1"); g.e(f"s_add_u32 s{sT0}, s{sT0}, s{sT1}"); g.e(f"s_add_u32 s{sT0}, s{sT0}, 256")
    g.e(f"v_add_u32 v13, s{sT0}, v12"); g.e("ds_write_b16 v13, v116")
    g.e("s_waitcnt lgkmcnt(0)"); g.e("s_barrier")
    for part in range(2):
        g.e(f"v_add_u32 v12, {64*part}, v{vLANE}")
        g.e(f"v_mul_u32_u24 v13, 3641, v12"); g.e("v_lshrrev_b32 v13, 16, v13")
        g.e("v_mul_u32_u24 v14, 18, v13"); g.e("v_sub_u32 v14, v12, v14")
        g.e(f"s_lshl_b32 s{sT0}, s{sWAVE}, 2"); g.e(f"v_add_u32 v13, s{sT0}, v13")
        g.e("v_mul_u32_u24 v15, 288, v13"); g.e("v_lshl_add_u32 v15, v14, 4, v15"); g.e(f"v_add_u32 v15, {OUTB}, v15")
        g.e(f"ds_read_b128 v[{76+4*part}:{79+4*part}], v15")
        g.e(f"s_lshl_b32 s{sT0}, s{sTG}, 5"); g.e(f"v_add_u32 v13, s{sT0}, v13"); g.e("v_mul_u32_u24 v13, 1152, v13"); g.e(f"v_lshl_add_u32 v{16+part}, v14, 4, v13")
    g.e(f"s_mul_i32 s{sT0}, s{sCG}, 288")
    g.e("s_waitcnt lgkmcnt(1)"); g.e(f"buffer_store_dwordx4 v[76:79], v16, {sr(sOUT,4)}, s{sT0} offen sc1")
    g.e("s_mov_b32 exec_lo, 0xff"); g.e("s_mov_b32 exec_hi, 0"); g.e("s_waitcnt lgkmcnt(0)")
    g.e(f"buffer_store_dwordx4 v[80:83], v17, {sr(sOUT,4)}, s{sT0} offen sc1")
    g.e("s_mov_b64 exec, -1")
    stamp(g, 28)

TMX = MISC; CCNT = MISC + 64; CAND = MISC + 128
def wave_max_u32(g, v, t):
    for k in (8, 4, 2, 1): g.e(f"v_max_u32_dpp v{v}, v{v}, v{v} row_ror:{k} row_mask:0xf bank_mask:0xf")
    g.e(f"v_mov_b32 v{t}, v{v}"); g.e(f"v_permlane16_swap_b32 v{v}, v{t}"); g.e(f"v_max_u32 v{v}, v{v}, v{t}")
    g.e(f"v_mov_b32 v{t}, v{v}"); g.e(f"v_permlane32_swap_b32 v{v}, v{t}"); g.e(f"v_max_u32 v{v}, v{v}, v{t}")

def top8(g):
    g.e(f"v_lshlrev_b32 v12, 2, v{vLANE}"); g.e(f"v_add_u32 v12, {TMX}, v12"); g.e("v_mov_b32 v13, 0")
    g.e("ds_write_b32 v12, v13"); g.e("ds_write_b32 v12, v13 offset:256")
    Lr = g.uid("rg")
    g.e(f"s_cmp_ge_u32 s{sWAVE}, 2"); g.e(f"s_cbranch_scc1 {Lr}")
    g.e(f"v_lshlrev_b32 v12, 4, v{vLANE}"); g.e(f"s_lshl_b32 s{sT1}, s{sWAVE}, 12"); g.e(f"v_add_u32 v14, s{sT1}, v12"); g.e(f"v_add_u32 v14, {RK}, v14"); g.e(f"s_add_u32 s{sT1}, s{sT1}, {RWS}")
    def ld():
        for t in range(4): g.e(f"buffer_load_dwordx4 {vr(76+4*t,4)}, v12, {sr(sWS,4)}, s{sT1} offen offset:{1024*t} sc1")
    poll_loop(g, ld, lambda: maxchk(g, range(76, 92), 13), SPIN//4)
    for t in range(4): g.e(f"ds_write_b128 v14, {vr(76+4*t,4)} offset:{1024*t}")
    g.lab(Lr)
    g.e("s_waitcnt lgkmcnt(0)"); g.e("s_barrier")
    stamp(g, 30); stamp_cnt(g, 43)
    g.e(f"v_lshlrev_b32 v12, 4, v{vTID}"); g.e(f"v_add_u32 v12, {RK}, v12"); g.e("ds_read_b128 v[76:79], v12"); g.e("s_waitcnt lgkmcnt(0)")
    g.e(f"v_lshlrev_b32 v14, 2, v{vTID}"); g.e("v_sub_u32 v14, 2047, v14")
    for q in range(4):
        g.e(f"v_ashrrev_i32 v{80+q}, 31, v{76+q}")
    for q in range(4):
        g.e(f"v_or_b32 v{80+q}, 0x80000000, v{80+q}"); g.e(f"v_xor_b32 v{76+q}, v{76+q}, v{80+q}")
        g.e(f"v_subrev_u32 v{80+q}, {q}, v14"); g.e(f"v_and_b32 v{76+q}, 0xfffff800, v{76+q}"); g.e(f"v_or_b32 v{76+q}, v{76+q}, v{80+q}")
    g.e("v_max3_u32 v81, v76, v77, v78"); g.e("v_max_u32 v81, v81, v79")
    for k in (8, 4, 2, 1): g.e(f"v_max_u32_dpp v81, v81, v81 row_ror:{k} row_mask:0xf bank_mask:0xf")
    g.e("v_mov_b32 v86, v81"); g.e("v_permlane16_swap_b32 v81, v86"); g.e("v_max_u32 v81, v81, v86")
    g.e(f"s_lshl_b32 s{sT0}, s{sWAVE}, 3"); g.e(f"v_lshrrev_b32 v15, 5, v{vLANE}"); g.e("v_lshlrev_b32 v15, 2, v15"); g.e(f"v_add_u32 v15, s{sT0}, v15"); g.e(f"v_add_u32 v15, {TMX}, v15")
    g.e("s_mov_b32 exec_lo, 1"); g.e("s_mov_b32 exec_hi, 1"); g.e("ds_write_b32 v15, v81"); g.e("s_mov_b64 exec, -1")
    g.e(f"v_lshlrev_b32 v12, 2, v{vN}"); g.e(f"v_add_u32 v12, {TMX}, v12"); g.e(f"v_lshlrev_b32 v13, 4, v{vGQ}"); g.e(f"v_add_u32 v13, {TMX}, v13")
    g.e("s_waitcnt lgkmcnt(0)"); g.e("s_barrier")
    g.e("ds_read_b32 v80, v12"); g.e("ds_read_b128 v[88:91], v13"); g.e("v_mov_b32 v83, 0"); g.e("s_waitcnt lgkmcnt(0)")
    for q in range(4): g.e(f"v_cmp_gt_u32 s[{66+2*q}:{67+2*q}], v{88+q}, v80")
    g.e("s_nop 0")
    for q in range(4): g.e(f"v_addc_co_u32 v83, s[74:75], 0, v83, s[{66+2*q}:{67+2*q}]")
    g.e("v_mov_b32 v86, v83"); g.e("v_permlane16_swap_b32 v83, v86"); g.e("v_add_u32 v83, v83, v86")
    g.e("v_mov_b32 v86, v83"); g.e("v_permlane32_swap_b32 v83, v86"); g.e("v_add_u32 v83, v83, v86")
    g.e("v_cmp_eq_u32 vcc, 7, v83"); g.e("s_nop 1"); g.e("s_ff1_i32_b64 s78, vcc"); g.e("s_nop 1"); g.e("v_readlane_b32 s79, v80, s78")
    if g3.TS: g.e(f"v_writelane_b32 v{vTS}, s79, 46"); g.e(f"v_writelane_b32 v{vTS}, s78, 47")
    stamp(g, 39)
    for q in range(4): g.e(f"v_cmp_le_u32 s[{66+2*q}:{67+2*q}], s79, v{76+q}")
    g.e("s_nop 1")
    for q in range(4): g.e(f"s_bcnt1_i32_b64 s{74+q}, s[{66+2*q}:{67+2*q}]")
    g.e("s_add_u32 s75, s75, s74"); g.e("s_add_u32 s76, s76, s75"); g.e("s_add_u32 s77, s77, s76")
    if g3.TS: g.e(f"v_writelane_b32 v{vTS}, s77, 52"); g.e("v_readlane_b32 s80, v80, 0"); g.e("v_readlane_b32 s81, v80, 1"); g.e("v_readlane_b32 s82, v83, 0"); g.e("v_readlane_b32 s83, v83, 1"); g.e("s_nop 3"); g.e(f"v_writelane_b32 v{vTS}, s80, 53"); g.e(f"v_writelane_b32 v{vTS}, s81, 54"); g.e(f"v_writelane_b32 v{vTS}, s82, 55"); g.e(f"v_writelane_b32 v{vTS}, s83, 56")
    g.e(f"v_mov_b32 v15, {CCNT}"); g.e("v_mov_b32 v13, s77")
    g.e("s_mov_b64 exec, 1"); g.e("ds_add_rtn_u32 v14, v15, v13"); g.e("s_mov_b64 exec, -1")
    for q in range(4):
        g.e(f"v_mbcnt_lo_u32_b32 v{88+q}, s{66+2*q}, 0"); g.e(f"v_mbcnt_hi_u32_b32 v{88+q}, s{67+2*q}, v{88+q}")
    g.e("s_waitcnt lgkmcnt(0)"); g.e("v_readfirstlane_b32 s78, v14")
    for q in range(4):
        if q: g.e(f"s_add_u32 s79, s78, s{73+q}")
        g.e(f"v_add_u32 v{88+q}, s{78 if q == 0 else 79}, v{88+q}"); g.e(f"v_min_u32 v{88+q}, 63, v{88+q}"); g.e(f"v_lshlrev_b32 v{88+q}, 2, v{88+q}"); g.e(f"v_add_u32 v{88+q}, {CAND}, v{88+q}")
    for q in range(4):
        g.e(f"s_mov_b64 exec, s[{66+2*q}:{67+2*q}]"); g.e(f"ds_write_b32 v{88+q}, v{76+q}")
    g.e("s_mov_b64 exec, -1")
    g.e(f"v_and_b32 v12, 31, v{vLANE}"); g.e("v_lshlrev_b32 v12, 2, v12"); g.e(f"v_add_u32 v12, {CAND}, v12")
    g.e(f"v_lshrrev_b32 v13, 5, v{vLANE}"); g.e("v_lshlrev_b32 v13, 6, v13"); g.e(f"v_add_u32 v13, {CAND}, v13"); g.e(f"v_mov_b32 v15, {CCNT}")
    g.e("s_waitcnt lgkmcnt(0)"); g.e("s_barrier")
    g.e("ds_read_b32 v14, v15"); g.e("ds_read_b32 v82, v12")
    for k in range(4): g.e(f"ds_read_b128 {vr(88+4*k,4)}, v13 offset:{16*k}")
    g.e("v_mov_b32 v83, 0"); g.e("s_waitcnt lgkmcnt(5)"); g.e("v_readfirstlane_b32 s78, v14")
    Lslow, Ldone = g.uid("t8s"), g.uid("t8d")
    if g3.TS: g.e("s_nop 3"); g.e(f"v_writelane_b32 v{vTS}, s78, 45")
    stamp(g, 49)
    g.e("s_cmp_gt_u32 s78, 32"); g.e(f"s_cbranch_scc1 {Lslow}")
    g.e("s_waitcnt lgkmcnt(0)")
    for k in range(4):
        for q in range(4): g.e(f"v_cmp_gt_u32 s[{66+2*q}:{67+2*q}], v{88+4*k+q}, v82")
        g.e("s_nop 0")
        for q in range(4): g.e(f"v_addc_co_u32 v83, s[74:75], 0, v83, s[{66+2*q}:{67+2*q}]")
    g.e("v_mov_b32 v86, v83"); g.e("v_permlane32_swap_b32 v83, v86"); g.e("v_add_u32 v83, v83, v86")
    g.e("v_cmp_gt_u32 vcc, 8, v83"); g.e("v_lshlrev_b32 v13, 2, v83"); g.e(f"s_lshl_b32 s{sT0}, s{sWAVE}, 5"); g.e(f"s_add_u32 s{sT0}, s{sT0}, {CAND + 512}"); g.e(f"v_add_u32 v13, s{sT0}, v13")
    g.e("s_mov_b32 exec_lo, vcc_lo"); g.e("s_mov_b32 exec_hi, 0"); g.e("ds_write_b32 v13, v82"); g.e("s_mov_b64 exec, -1")
    g.e(f"v_and_b32 v12, 7, v{vLANE}"); g.e("v_lshlrev_b32 v12, 2, v12"); g.e(f"v_add_u32 v12, s{sT0}, v12")
    g.e("s_waitcnt lgkmcnt(0)"); g.e("ds_read_b32 v87, v12"); g.e("s_waitcnt lgkmcnt(0)"); g.e(f"s_branch {Ldone}")
    g.lab(Lslow)
    g.e("s_waitcnt lgkmcnt(0)")
    g.e(f"v_lshlrev_b32 v12, 2, v{vLANE}"); g.e(f"v_add_u32 v12, {CAND + 1024}, v12"); g.e("v_mov_b32 v13, 0")
    g.e("s_mov_b64 exec, 0xff"); g.e("ds_write_b32 v12, v13"); g.e("s_mov_b64 exec, -1"); g.e("s_waitcnt lgkmcnt(0)"); g.e("s_barrier")
    g.e(f"v_mov_b32 v80, -1"); g.e(f"v_mov_b32 v15, {CAND + 1024}"); g.e("s_mov_b32 s79, 0")
    Lq = g.uid("t8q"); g.lab(Lq)
    for q in range(4):
        g.e(f"v_cmp_lt_u32 vcc, v{76+q}, v80"); g.e("s_nop 1"); g.e(f"v_cndmask_b32 v{82+q}, 0, v{76+q}, vcc")
    g.e("v_max3_u32 v81, v82, v83, v84"); g.e("v_max_u32 v81, v81, v85")
    wave_max_u32(g, 81, 86)
    g.e("s_mov_b64 exec, 1"); g.e("ds_max_u32 v15, v81"); g.e("s_mov_b64 exec, -1")
    g.e("s_waitcnt lgkmcnt(0)"); g.e("s_barrier")
    g.e("ds_read_b32 v80, v15"); g.e("v_add_u32 v15, 4, v15"); g.e("s_add_u32 s79, s79, 1"); g.e("s_cmp_lt_u32 s79, 8"); g.e("s_waitcnt lgkmcnt(0)"); g.e(f"s_cbranch_scc1 {Lq}")
    g.e(f"v_and_b32 v12, 7, v{vLANE}"); g.e("v_lshlrev_b32 v12, 2, v12"); g.e(f"v_add_u32 v12, {CAND + 1024}, v12"); g.e("ds_read_b32 v87, v12"); g.e("s_waitcnt lgkmcnt(0)")
    g.lab(Ldone)
    g.e("v_and_b32 v87, 0x7ff, v87"); g.e("v_sub_u32 v87, 2047, v87")

def phase_CD(g, opts):
    g.e(f"s_cmp_ge_u32 s{sJ}, 27"); g.e("s_cbranch_scc1 L_S")
    g.e(f"s_cmp_ge_u32 s{sJ}, 18"); g.e("s_cbranch_scc1 L_D")
    c_dma(g)
    g.e(f"s_lshr_b32 s{sT1}, s{sWAVE}, 2")
    g.e(f"s_lshr_b32 s{sT2}, s{sWQ}, 1"); g.e(f"s_mul_i32 s{sT2}, s{sT2}, 36864"); g.e(f"s_and_b32 s{sT0}, s{sWQ}, 1"); g.e(f"s_lshl_b32 s{sT0}, s{sT0}, 5"); g.e(f"s_add_u32 s{sT2}, s{sT2}, s{sT0}")
    g.e(f"s_mul_i32 s{sT0}, s{sT1}, {9*2048}"); g.e(f"s_add_u32 s{sT2}, s{sT2}, s{sT0}")
    g.e(f"v_lshlrev_b32 v16, 6, v{vRP}"); g.e(f"v_and_b32 v13, 3, v{vLANE}"); g.e("v_lshl_add_u32 v16, v13, 3, v16"); g.e(f"v_add_u32 v16, s{sT2}, v16")
    g.e(f"v_and_b32 v12, 7, v{vN}"); g.e("v_lshlrev_b32 v12, 4, v12"); g.e(f"v_lshl_add_u32 v12, v{vGQ}, 7, v12")
    g.e(f"s_mul_i32 s{sT2}, s{sXCD}, 9216"); g.e(f"s_mul_i32 s{sT1}, s{sT1}, {9*512}"); g.e(f"s_add_u32 s{sT1}, s{sT1}, s{sT2}"); g.e(f"s_add_u32 s{sT1}, s{sT1}, {XSL}")
    g.e("s_waitcnt vmcnt(0)"); g.e("s_barrier")
    for s in range(9):
        for h in range(2): g.e(f"ds_read_b64_tr_b16 {vr(148+4*s+2*h,2)}, v16 offset:{CIM + s*2048 + h*512}")
    stamp(g, 33)
    Llp = g.uid("lp")
    g.e(f"s_cmp_eq_u32 s{sWAVE}, 0"); g.e(f"s_cbranch_scc0 {Llp}")
    g.e(f"v_min_u32 v13, 17, v{vLANE}"); g.e("v_lshlrev_b32 v13, 9, v13"); g.e("v_add_u32 v13, 508, v13"); g.e(f"s_mul_i32 s{sT2}, s{sXCD}, 9216"); g.e(f"s_add_u32 s{sT2}, s{sT2}, {XSL}")
    poll_loop(g, lambda: g.e(f"buffer_load_dword v14, v13, {sr(sWS,4)}, s{sT2} offen sc1"), lambda: g.e("v_cmp_eq_u32 vcc, -1, v14"), SPIN//4)
    g.lab(Llp)
    g.e("s_barrier")
    def ld():
        for s in range(9):
            if s == 8: g.e(f"s_add_u32 s{sT2}, s{sT1}, 4096")
            g.e(f"buffer_load_dwordx4 {vr(76+4*s,4)}, v12, {sr(sWS,4)}, s{sT1 if s < 8 else sT2} offen offset:{(s % 8)*512} sc1")
    poll_loop(g, ld, lambda: maxchk(g, range(76, 112), 13), SPIN//4)
    stamp(g, 32)
    g.e("s_waitcnt lgkmcnt(0)")
    for s in range(9): mfma32(g, 16 + 4*(s & 1), 148+4*s, 76+4*s, None if s < 2 else 16 + 4*(s & 1))
    for r in range(4): g.e(f"v_add_f32 v{16+r}, v{16+r}, v{20+r}")
    g.e(f"s_lshl_b32 s{sT0}, s{sWAVE}, 10"); g.e(f"s_add_u32 s{sT0}, s{sT0}, {RED}"); g.e(f"v_lshlrev_b32 v12, 4, v{vLANE}"); g.e(f"v_add_u32 v12, s{sT0}, v12")
    g.e("ds_write_b128 v12, v[16:19]"); g.e("s_waitcnt lgkmcnt(0)"); g.e("s_barrier")
    stamp(g, 34)
    g.e(f"s_cmp_ge_u32 s{sWAVE}, 2"); g.e("s_cbranch_scc1 L_exit")
    g.e(f"v_lshrrev_b32 v12, 5, v{vTID}"); g.e(f"v_bfe_u32 v13, v{vTID}, 2, 3"); g.e(f"v_and_b32 v14, 3, v{vTID}")
    g.e("v_lshlrev_b32 v15, 3, v12"); g.e("v_lshl_add_u32 v15, v14, 1, v15")
    g.e("v_lshrrev_b32 v16, 4, v15"); g.e("v_lshlrev_b32 v16, 10, v16")
    g.e("v_bfe_u32 v17, v15, 2, 2"); g.e("v_lshl_add_u32 v17, v17, 4, v13"); g.e("v_lshl_add_u32 v16, v17, 4, v16")
    g.e("v_and_b32 v17, 3, v15"); g.e("v_lshl_add_u32 v16, v17, 2, v16"); g.e(f"v_add_u32 v16, {RED}, v16")
    g.e("ds_read_b64 v[20:21], v16"); g.e("ds_read_b64 v[22:23], v16 offset:4096"); g.e("ds_read_b64 v[24:25], v16 offset:2048"); g.e("ds_read_b64 v[26:27], v16 offset:6144")
    g.e(f"s_lshl_b32 s{sT0}, s{sF0}, 4"); g.e(f"s_add_u32 s{sT0}, s{sT0}, {ACT}"); g.e(f"v_lshlrev_b32 v12, 2, v{vTID}")
    g.e("s_waitcnt lgkmcnt(0)")
    for e in range(2):
        g.e(f"v_add_f32 v{20+e}, v{20+e}, v{22+e}"); g.e(f"v_add_f32 v{24+e}, v{24+e}, v{26+e}")
    for e in range(2): g.e(f"v_mul_f32 v{28+e}, 0xbfb8aa3b, v{20+e}")
    for e in range(2): g.e(f"v_exp_f32 v{28+e}, v{28+e}")
    for e in range(2): g.e(f"v_add_f32 v{28+e}, 1.0, v{28+e}")
    for e in range(2): g.e(f"v_rcp_f32 v{28+e}, v{28+e}")
    for e in range(2): g.e(f"v_mul_f32 v{20+e}, v{20+e}, v{24+e}")
    for e in range(2): g.e(f"v_mul_f32 v{20+e}, v{20+e}, v{28+e}")
    g.e("v_cvt_pk_bf16_f32 v20, v20, v21")
    g.e(f"buffer_store_dword v20, v12, {sr(sWS,4)}, s{sT0} offen sc1")
    g.e("s_branch L_exit")
    g.lab("L_S")
    g.e(f"s_cmp_eq_u32 s{sJ}, 27"); g.e("s_cbranch_scc0 L_exit")
    top8(g)
    stamp(g, 31)
    g.e(f"v_readlane_b32 s{sT3}, v87, s{sWAVE}")
    g.e(f"s_mul_i32 s{sT1}, s{sT3}, 1152"); g.e(f"s_lshl_b32 s{sT2}, s{sT3}, 3"); g.e(f"s_add_u32 s{sT2}, s{sT2}, {MRS}")
    g.e(f"s_lshl_b32 s{sT4}, s{sT3}, 2"); g.e(f"s_add_u32 s{sT4}, s{sT4}, {RWS}")
    g.e(f"v_lshlrev_b32 v12, 4, v{vLANE}"); g.e("v_mov_b32 v16, 0")
    g.e(f"v_cmp_gt_u32 vcc, 8, v{vLANE}"); g.e("v_add_u32 v14, 1024, v12"); g.e("v_mov_b32 v15, 0"); g.e("v_cndmask_b32 v14, v15, v14, vcc")
    def ld():
        g.e(f"buffer_load_dwordx4 v[76:79], v12, {sr(sOUT,4)}, s{sT1} offen sc1"); g.e(f"buffer_load_dwordx4 v[80:83], v14, {sr(sOUT,4)}, s{sT1} offen sc1")
        g.e(f"buffer_load_dwordx2 v[84:85], v16, {sr(sWS,4)}, s{sT2} offen sc1"); g.e(f"buffer_load_dword v86, v16, {sr(sWS,4)}, s{sT4} offen sc1")
    poll_loop(g, ld, lambda: maxchk(g, range(76, 87), 15), SPIN//4)
    stamp(g, 35)
    for k in range(8):
        g.e(f"v_lshlrev_b32 v13, 16, v{76+k}"); g.e(f"v_and_b32 v15, 0xffff0000, v{76+k}")
        g.e("v_fma_f32 v13, v13, v84, v85"); g.e("v_fma_f32 v15, v15, v84, v85"); g.e(f"v_cvt_pk_bf16_f32 v{76+k}, v13, v15")
    g.e("v_mul_f32 v86, 0xbfb8aa3b, v86"); g.e("v_exp_f32 v86, v86"); g.e("v_add_f32 v86, 1.0, v86"); g.e("v_rcp_f32 v87, v86"); g.e(f"v_mov_b32 v86, s{sT3}")
    g.e(f"s_mul_i32 s{sT0}, s{sWAVE}, 1168"); g.e(f"s_add_u32 s{sT0}, s{sT0}, {XS}"); g.e(f"v_lshlrev_b32 v12, 4, v{vLANE}"); g.e(f"v_add_u32 v12, s{sT0}, v12")
    g.e("ds_write_b128 v12, v[76:79]")
    g.e("s_mov_b64 exec, 0xff"); g.e("ds_write_b128 v12, v[80:83] offset:1024"); g.e("s_mov_b64 exec, -1")
    g.e(f"s_lshl_b32 s{sT0}, s{sXCD}, 7"); g.e(f"s_lshl_b32 s{sT1}, s{sWAVE}, 3"); g.e(f"s_add_u32 s{sT0}, s{sT0}, s{sT1}"); g.e(f"s_add_u32 s{sT0}, s{sT0}, {SLI}")
    g.e("s_mov_b64 exec, 1"); g.e(f"buffer_store_dwordx2 v[86:87], v16, {sr(sWS,4)}, s{sT0} offen sc1"); g.e("s_mov_b64 exec, -1")
    g.e(f"v_and_b32 v13, 7, v{vTID}"); g.e("v_mul_u32_u24 v13, 1168, v13"); g.e(f"v_lshrrev_b32 v14, 3, v{vTID}"); g.e("v_lshl_add_u32 v13, v14, 4, v13"); g.e(f"v_add_u32 v13, {XS}, v13")
    g.e(f"v_lshlrev_b32 v12, 4, v{vTID}"); g.e(f"s_mul_i32 s{sT0}, s{sXCD}, 9216"); g.e(f"s_add_u32 s{sT0}, s{sT0}, {XSL}")
    g.e("s_waitcnt lgkmcnt(0)"); g.e("s_barrier")
    g.e("ds_read_b128 v[76:79], v13"); g.e("ds_read_b128 v[80:83], v13 offset:1024"); g.e("s_waitcnt lgkmcnt(1)")
    g.e(f"buffer_store_dwordx4 v[76:79], v12, {sr(sWS,4)}, s{sT0} offen sc1")
    g.e(f"s_cmp_eq_u32 s{sWAVE}, 0"); g.e("s_cbranch_scc0 L_exit")
    g.e(f"s_add_u32 s{sT0}, s{sT0}, 8192"); g.e("s_waitcnt lgkmcnt(0)")
    g.e(f"buffer_store_dwordx4 v[80:83], v12, {sr(sWS,4)}, s{sT0} offen sc1")
    g.e("s_branch L_exit")
    g.lab("L_D")
    d_dma(g)
    g.e(f"s_and_b32 s{sT4}, s{sF0}, 7"); g.e(f"s_cmp_eq_u32 s{sT4}, s{sXCD}"); g.e(f"s_cselect_b32 s{sT4}, 1, 0")
    g.e(f"s_lshr_b32 s{sT1}, s{sWAVE}, 2")
    g.e(f"v_bfe_u32 v13, v{vRP}, 1, 2"); g.e(f"v_xor_b32 v13, s{sWQ}, v13"); g.e("v_lshlrev_b32 v13, 5, v13")
    g.e(f"v_lshlrev_b32 v12, 7, v{vRP}"); g.e("v_add_u32 v12, v12, v13"); g.e(f"v_and_b32 v13, 3, v{vLANE}"); g.e("v_lshl_add_u32 v12, v13, 3, v12")
    g.e(f"s_mul_i32 s{sT0}, s{sT1}, {9*4096}"); g.e(f"v_add_u32 v12, s{sT0}, v12")
    g.e("s_waitcnt vmcnt(0)"); g.e("s_barrier")
    for s in range(9):
        for h in range(2): g.e(f"ds_read_b64_tr_b16 {vr(148+4*s+2*h,2)}, v12 offset:{CIM + s*4096 + h*1024}")
    Lnf = g.uid("nf")
    g.e(f"s_cmp_eq_u32 s{sT4}, 0"); g.e(f"s_cbranch_scc1 {Lnf}")
    g.e(f"s_lshl_b32 s{sT0}, s{sXCD}, 7"); g.e(f"s_lshl_b32 s{sT2}, s{sWAVE}, 3"); g.e(f"s_add_u32 s{sT0}, s{sT0}, s{sT2}"); g.e(f"s_add_u32 s{sT2}, s{sT0}, {SLI}"); g.e("v_mov_b32 v16, 0")
    poll_loop(g, lambda: (g.e("s_sleep 2"), g.e(f"buffer_load_dwordx2 v[232:233], v16, {sr(sWS,4)}, s{sT2} offen sc1")), lambda: maxchk(g, [232, 233], 13), SPIN//4)
    g.e(f"v_readfirstlane_b32 s{sT3}, v232")
    g.e(f"s_mul_i32 s{sT3}, s{sT3}, 1152"); g.e(f"s_lshl_b32 s{sT2}, s{sF0}, 7"); g.e(f"s_add_u32 s{sT5}, s{sT3}, s{sT2}")
    g.e(f"v_and_b32 v231, 31, v{vLANE}"); g.e("v_lshlrev_b32 v231, 2, v231")
    poll_loop(g, lambda: g.e(f"buffer_load_dword v232, v231, {sr(sOUT,4)}, s{sT5} offen sc1"), lambda: g.e("v_cmp_eq_u32 vcc, -1, v232"), SPIN//4)
    g.lab(Lnf)
    stamp(g, 35)
    g.e(f"v_and_b32 v12, 7, v{vN}"); g.e("v_lshlrev_b32 v12, 4, v12"); g.e(f"v_lshl_add_u32 v12, v{vGQ}, 7, v12")
    g.e(f"s_lshr_b32 s{sT1}, s{sWAVE}, 2"); g.e(f"s_mul_i32 s{sT2}, s{sXCD}, 18"); g.e(f"s_mul_i32 s{sT1}, s{sT1}, 9"); g.e(f"s_add_u32 s{sT1}, s{sT1}, s{sT2}"); g.e(f"s_lshl_b32 s{sT1}, s{sT1}, 9"); g.e(f"s_add_u32 s{sT1}, s{sT1}, {ACT}")
    Llp = g.uid("lp")
    g.e(f"s_cmp_eq_u32 s{sWAVE}, 0"); g.e(f"s_cbranch_scc0 {Llp}")
    g.e(f"v_min_u32 v13, 17, v{vLANE}"); g.e("v_lshlrev_b32 v13, 9, v13"); g.e("v_add_u32 v13, 508, v13"); g.e(f"s_mul_i32 s{sT2}, s{sXCD}, {18*512}"); g.e(f"s_add_u32 s{sT2}, s{sT2}, {ACT}")
    poll_loop(g, lambda: g.e(f"buffer_load_dword v14, v13, {sr(sWS,4)}, s{sT2} offen sc1"), lambda: g.e("v_cmp_eq_u32 vcc, -1, v14"), SPIN//4)
    g.lab(Llp)
    g.e("s_barrier")
    def ld():
        for s in range(9):
            if s == 8: g.e(f"s_add_u32 s{sT2}, s{sT1}, 4096")
            g.e(f"buffer_load_dwordx4 {vr(76+4*s,4)}, v12, {sr(sWS,4)}, s{sT1 if s < 8 else sT2} offen offset:{(s % 8)*512} sc1")
    poll_loop(g, ld, lambda: maxchk(g, range(76, 112), 13), SPIN//4)
    stamp(g, 36); stamp_cnt(g, 44)
    g.e("s_waitcnt lgkmcnt(0)")
    for s in range(9): mfma32(g, 16 + 4*(s & 1), 148+4*s, 76+4*s, None if s < 2 else 16 + 4*(s & 1))
    for r in range(4): g.e(f"v_add_f32 v{16+r}, v{16+r}, v{20+r}")
    g.e(f"s_lshl_b32 s{sT0}, s{sWAVE}, 10"); g.e(f"s_add_u32 s{sT0}, s{sT0}, {RED}"); g.e(f"v_lshlrev_b32 v12, 4, v{vLANE}"); g.e(f"v_add_u32 v13, s{sT0}, v12")
    g.e("ds_write_b128 v13, v[16:19]"); g.e("s_waitcnt lgkmcnt(0)"); g.e("s_barrier")
    Lp = g.uid("yp")
    g.e(f"s_cmp_ge_u32 s{sWAVE}, 4"); g.e(f"s_cbranch_scc1 {Lp}")
    g.e("ds_read_b128 v[20:23], v13 offset:4096"); g.e("s_waitcnt lgkmcnt(0)")
    for r in range(4): g.e(f"v_add_f32 v{16+r}, v{16+r}, v{20+r}")
    g.e(f"v_lshlrev_b32 v14, 4, v{vN}"); g.e(f"v_lshl_add_u32 v14, v{vGQ}, 7, v14")
    g.e(f"s_lshl_b32 s{sT0}, s{sF0}, 3"); g.e(f"s_add_u32 s{sT0}, s{sT0}, s{sXCD}"); g.e(f"s_lshl_b32 s{sT0}, s{sT0}, 11"); g.e(f"s_lshl_b32 s{sT1}, s{sWAVE}, 9"); g.e(f"s_add_u32 s{sT0}, s{sT0}, s{sT1}"); g.e(f"s_add_u32 s{sT0}, s{sT0}, {YP}")
    g.e("s_mov_b32 exec_lo, 0x00ff00ff"); g.e("s_mov_b32 exec_hi, 0x00ff00ff")
    g.e(f"buffer_store_dwordx4 v[16:19], v14, {sr(sWS,4)}, s{sT0} offen sc1")
    g.e("s_mov_b64 exec, -1")
    g.lab(Lp)
    stamp(g, 37)
    g.e(f"s_cmp_eq_u32 s{sT4}, 0"); g.e("s_cbranch_scc1 L_exit")
    g.e(f"v_and_b32 v12, 31, v{vLANE}"); g.e("v_lshrrev_b32 v13, 3, v12"); g.e("v_lshlrev_b32 v13, 9, v13"); g.e("v_bfe_u32 v14, v12, 1, 2"); g.e("v_lshl_add_u32 v13, v14, 7, v13")
    g.e("v_and_b32 v14, 1, v12"); g.e("v_lshl_add_u32 v13, v14, 3, v13"); g.e(f"s_lshl_b32 s{sT0}, s{sWAVE}, 4"); g.e(f"v_add_u32 v13, s{sT0}, v13")
    g.e(f"v_lshrrev_b32 v14, 5, v{vLANE}"); g.e("v_lshlrev_b32 v14, 13, v14"); g.e("v_add_u32 v13, v13, v14")
    g.e(f"s_lshl_b32 s{sT1}, s{sF0}, 14"); g.e(f"s_add_u32 s{sT1}, s{sT1}, {YP}")
    def ld():
        for x in range(4):
            if x == 2: g.e(f"s_add_u32 s{sT2}, s{sT1}, 4096")
            g.e(f"buffer_load_dwordx2 v[{76+2*x}:{77+2*x}], v13, {sr(sWS,4)}, s{sT1 if x < 2 else sT2} offen offset:{(x % 2)*2048} sc1")
    poll_loop(g, ld, lambda: maxchk(g, range(76, 84), 14), SPIN//4)
    stamp(g, 38)
    g.e("v_add_f32 v76, v76, v78"); g.e("v_add_f32 v77, v77, v79"); g.e("v_add_f32 v80, v80, v82"); g.e("v_add_f32 v81, v81, v83")
    g.e("v_add_f32 v76, v76, v80"); g.e("v_add_f32 v77, v77, v81")
    g.e("v_mov_b32 v78, v76"); g.e("v_mov_b32 v79, v77")
    g.e("v_permlane32_swap_b32 v76, v78"); g.e("v_permlane32_swap_b32 v77, v79")
    g.e("v_add_f32 v76, v76, v78"); g.e("v_add_f32 v77, v77, v79")
    g.e("v_lshlrev_b32 v12, 16, v232"); g.e("v_and_b32 v13, 0xffff0000, v232")
    g.e("v_fma_f32 v12, v76, v233, v12"); g.e("v_fma_f32 v13, v77, v233, v13"); g.e("v_cvt_pk_bf16_f32 v12, v12, v13")
    g.e("s_mov_b32 exec_hi, 0")
    g.e(f"buffer_store_dword v12, v231, {sr(sOUT,4)}, s{sT5} offen sc1")
    g.e("s_mov_b32 exec_hi, -1")
```

```python
import sys
KNAME = "sequential_preLN__linear_kernel_hedgehog__moe_arch_mod__prompt_kernel"
KVP, OWS, STP, RWS, MRS, ACT, YP = 0, 786432, 3145728, 3276800, 3284992, 3301376, 3375104
XSL = 3522560
SLI = XSL + 8*9216
POIS_PER_WG = 14336
DBGA = 0x1000000; TSA = 0x2000000
SLOT, WOFF, NSLOT = 26624, 16384, 4
MISC = 159744
WBLK = MISC; STAT = MISC
FLG = MISC + 4064
WQ = 4 * SLOT
VIM = 0; KVT = 10240; WO1 = 13312; PHI = 77824; KVS = 98304
WO2 = 13312
OIM = 114688
CSQ = 152576
LDS_TOTAL = 163840
SPIN = 40000
TS = False
PIPE = 1
EXP = ''
STG = True
NTX = ''; NTW = ''; NTWO = ''; NTC = 'nt'; MOET = False
vTS = 74

class G:
    def __init__(s): s.L = []; s.n = 0
    def e(s, t): s.L.append("  " + t)
    def lab(s, t): s.L.append(t + ":")
    def uid(s, p): s.n += 1; return f"L_{p}_{s.n}"
def vr(a, n=1): return f"v{a}" if n == 1 else f"v[{a}:{a+n-1}]"
def sr(a, n=1): return f"s{a}" if n == 1 else f"s[{a}:{a+n-1}]"

sX, sW, sWS, sOUT, sWO, sG, sU, sDN, sPH, sDB, sWR = 4, 8, 12, 16, 20, 24, 28, 32, 36, 40, 44
sWAVE, sWQ, sTT, sHP, sTG, sCG, sXCD, sJ, sSH = 48, 49, 50, 51, 52, 53, 54, 55, 56
sT0, sT1, sT2, sT3, sT4, sT5 = 57, 58, 59, 60, 61, 62
sROT = 63
sKA = 64
sM0X, sM0W, sMASK8, sL2E, sCNT, sEX = 88, 89, 90, 92, 93, 94
sA = 3

def srd(g, d, plo, size):
    g.e(f"s_mov_b32 s{d}, s{plo}"); g.e(f"s_mov_b32 s{d+1}, s{plo+1}"); g.e(f"s_mov_b32 s{d+2}, {size}"); g.e(f"s_mov_b32 s{d+3}, 0x20000")
def mfma32(g, d, a, b, c): g.e(f"v_mfma_f32_16x16x32_bf16 {vr(d,4)}, {vr(a,4)}, {vr(b,4)}, {('0' if c is None else vr(c,4))}")
def mfma16(g, d, a, b, c): g.e(f"v_mfma_f32_16x16x16_bf16 {vr(d,4)}, {vr(a,2)}, {vr(b,2)}, {('0' if c is None else vr(c,4))}")
def stamp(g, idx):
    if not TS: return
    g.e("s_memrealtime s[98:99]"); g.e("s_waitcnt lgkmcnt(0)"); g.e(f"v_writelane_b32 v{vTS}, s98, {idx}")
def stamp_cnt(g, idx):
    if TS: g.e(f"v_writelane_b32 v{vTS}, s{sCNT}, {idx}")

def lds_signal(g, flag, va, vb):
    g.e("s_waitcnt lgkmcnt(0)")
    g.e(f"v_mov_b32 v{va}, {FLG + 4*flag}"); g.e(f"v_mov_b32 v{vb}, 1")
    g.e("s_mov_b64 exec, 1"); g.e(f"ds_add_u32 v{va}, v{vb}"); g.e("s_mov_b64 exec, -1")
def lds_wait(g, flag, target, va, vb):
    L = g.uid("lw"); Ld = g.uid("lwd")
    g.e(f"v_mov_b32 v{va}, {FLG + 4*flag}"); g.e(f"s_mov_b32 s{sCNT}, 0")
    g.lab(L)
    g.e(f"ds_read_b32 v{vb}, v{va}"); g.e(f"s_add_u32 s{sCNT}, s{sCNT}, 1"); g.e("s_waitcnt lgkmcnt(0)")
    g.e(f"v_readfirstlane_b32 s{sT0}, v{vb}")
    g.e(f"s_cmp_gt_u32 s{sCNT}, {SPIN}"); g.e(f"s_cbranch_scc1 {Ld}")
    g.e(f"s_cmp_lt_u32 s{sT0}, {target}"); g.e(f"s_cbranch_scc1 {L}")
    g.lab(Ld)
def poll_loop(g, loads, check, spin):
    L, Ld = g.uid("pl"), g.uid("pld")
    g.e(f"s_mov_b32 s{sCNT}, 0"); g.lab(L)
    loads(); g.e(f"s_add_u32 s{sCNT}, s{sCNT}, 1"); g.e("s_waitcnt vmcnt(0)")
    check()
    g.e(f"s_cbranch_vccz {Ld}")
    g.e(f"s_cmp_gt_u32 s{sCNT}, {spin}"); g.e(f"s_cbranch_scc1 {Ld}"); g.e("s_sleep 1"); g.e(f"s_branch {L}")
    g.lab(Ld)
def maxchk(g, regs, t):
    regs = list(regs)
    if len(regs) >= 3: g.e(f"v_max3_u32 v{t}, v{regs[0]}, v{regs[1]}, v{regs[2]}"); regs = regs[3:]
    else: g.e(f"v_max_u32 v{t}, v{regs[0]}, v{regs[1]}"); regs = regs[2:]
    while len(regs) >= 2: g.e(f"v_max3_u32 v{t}, v{t}, v{regs[0]}, v{regs[1]}"); regs = regs[2:]
    if regs: g.e(f"v_max_u32 v{t}, v{t}, v{regs[0]}")
    g.e(f"v_cmp_eq_u32 vcc, -1, v{t}")
def swap23(g, d, s, t, mask="0xfffffff3"):
    g.e(f"v_and_b32 v{d}, {mask}, v{s}"); g.e(f"v_and_b32 v{t}, 4, v{s}"); g.e(f"v_lshl_or_b32 v{d}, v{t}, 1, v{d}")
    g.e(f"v_and_b32 v{t}, 8, v{s}"); g.e(f"v_lshrrev_b32 v{t}, 1, v{t}"); g.e(f"v_or_b32 v{d}, v{d}, v{t}")

def interleave(g, main, fill, lead=0, frac=1.0):
    n, m = len(main), len(fill)
    k = 0
    ne = max(1, int(n * frac))
    for i, x in enumerate(main):
        g.e(x)
        want = min(m, ((i + 1) * m + ne - 1) // ne) if i >= lead else 0
        while k < min(want, m):
            f = fill[k]; k += 1
            if isinstance(f, (list, tuple)):
                for y in f: g.e(y)
            else: g.e(f)
    while k < m:
        f = fill[k]; k += 1
        if isinstance(f, (list, tuple)):
            for y in f: g.e(y)
        else: g.e(f)
class Cap:
    def __init__(s, g): s.g = g
    def __enter__(s): s.save = s.g.L; s.g.L = []; return s
    def __exit__(s, *a): s.lines = [l.strip() for l in s.g.L]; s.g.L = s.save

class VM:
    def __init__(s): s.n = 0
    def issue(s, k=1): s.n += k; return s.n - 1
    def wait(s, g, idx):
        out = s.n - 1 - idx; assert out >= 0
        g.e(f"s_waitcnt vmcnt({min(out,63)})")

vTID, vLANE, vXo0, vXo1, vWo, vQo, vXa0, vXa1, vWa, vW2, vN, vGQ = 0, 1, 2, 3, 4, 5, 6, 7, 8, 9, 10, 11
vRP = 75
vONES = 52
vA2 = 56

def actual_stage(g, st):
    g.e(f"s_add_u32 s{sA}, s{sROT}, {st}"); g.e(f"s_sub_u32 s{sT0}, s{sA}, 9"); g.e(f"s_cmp_ge_u32 s{sA}, 9"); g.e(f"s_cselect_b32 s{sA}, s{sT0}, s{sA}")

sXA, sXB, sEX3 = 64, 73, 82
vW3 = (4, 156, 157)
def stage_offsets(g):
    for st in range(9):
        g.e(f"s_add_u32 s{sXA+st}, s{sROT}, {st}"); g.e(f"s_sub_u32 s{sT0}, s{sXA+st}, 9"); g.e(f"s_cmp_ge_u32 s{sXA+st}, 9"); g.e(f"s_cselect_b32 s{sXA+st}, s{sT0}, s{sXA+st}")
        g.e(f"s_lshl_b32 s{sXA+st}, s{sXA+st}, 7"); g.e(f"s_add_u32 s{sXB+st}, s{sXA+st}, 18432")
def dma_items(vm, kind, st, first=False):
    slot = (st % NSLOT) * SLOT; out = []
    if kind == "V":
        for i in range(4):
            out.append([f"s_add_u32 m0, s{sM0X}, {slot + i*1024}", "s_nop 0", f"buffer_load_dwordx4 v{vXo1 if i & 1 else vXo0}, {sr(sX,4)}, s{(sXB if i >= 2 else sXA)+st} offen {NTX} lds"]); vm.issue()
    else:
        out.append([f"s_mul_i32 s{sT1}, s{sXA+st}, 1728", f"s_add_u32 m0, s{sM0W}, {slot + WOFF}", "s_nop 0", f"buffer_load_dwordx4 v{vW3[0]}, {sr(sW,4)}, s{sT1} offen {NTW} lds"]); vm.issue()
        out.append([f"s_add_u32 m0, s{sM0W}, {slot + WOFF + 4096}", "s_nop 0", f"buffer_load_dwordx4 v{vW3[1]}, {sr(sW,4)}, s{sT1} offen {NTW} lds"]); vm.issue()
        out.append([f"s_add_u32 m0, s{sM0W}, {slot + WOFF + 8192}", f"s_mov_b64 exec, {sr(sEX3,2)}", f"buffer_load_dwordx4 v{vW3[2]}, {sr(sW,4)}, s{sT1} offen {NTW} lds", "s_mov_b64 exec, -1"]); vm.issue()
    return out
def dma_stage(g, vm, kind, st):
    for it in dma_items(vm, kind, st):
        for x in it: g.e(x)

vQ1, vQ2 = 12, 13
def wq_list():
    return None
def dma_wq_instr(g, vm, uexpr_add, p, vq, special=None):
    if special is None: g.e(f"s_add_u32 s{sT1}, s{sWQ}, {uexpr_add}")
    else: g.e(f"s_mov_b32 s{sT1}, {special}")
    g.e(f"s_mul_i32 s{sT2}, s{sT1}, 2560"); g.e(f"s_add_u32 m0, s{sT2}, {WQ + p*880}")
    g.e(f"s_lshl_b32 s{sT0}, s{sROT}, 1"); g.e(f"s_add_u32 s{sT1}, s{sT1}, s{sT0}"); g.e(f"s_sub_u32 s{sT0}, s{sT1}, 18"); g.e(f"s_cmp_ge_u32 s{sT1}, 18"); g.e(f"s_cselect_b32 s{sT1}, s{sT0}, s{sT1}")
    g.e(f"s_mul_i32 s{sT0}, s{sT1}, {32*3456}")
    g.e(f"s_mov_b32 exec_hi, {'0x7fffff' if p < 2 else '0x3ffff'}")
    g.e(f"buffer_load_dwordx4 v{vq}, {sr(sW,4)}, s{sT0} offen {NTW} lds"); vm.issue()
    g.e("s_mov_b32 exec_hi, -1")

def ids(g):
    g.e("s_cmp_ge_u32 s2, 256"); g.e("s_cbranch_scc1 L_exit0")
    if TS: g.e("s_memrealtime s[100:101]"); g.e("s_memtime s[96:97]")
    g.e(f"s_load_dwordx4 {sr(sKA,4)}, s[0:1], 0")
    g.e(f"s_load_dwordx4 {sr(sKA+4,4)}, s[0:1], 16")
    g.e(f"s_load_dwordx16 {sr(sKA+8,16)}, s[0:1], 32")
    g.e(f"v_lshrrev_b32 v12, 6, v0"); g.e(f"v_and_b32 v{vLANE}, 63, v0"); g.e(f"s_and_b32 s{sXCD}, s2, 7")
    g.e(f"v_readfirstlane_b32 s{sWAVE}, v12")
    g.e(f"s_lshr_b32 s{sJ}, s2, 3"); g.e(f"v_and_b32 v{vN}, 15, v0"); g.e(f"v_lshrrev_b32 v{vGQ}, 4, v{vLANE}")
    g.e(f"s_and_b32 s{sT0}, s{sXCD}, 1"); g.e(f"s_lshl_b32 s{sT0}, s{sT0}, 3"); g.e(f"s_and_b32 s{sT1}, s{sJ}, 7"); g.e(f"s_add_u32 s{sTT}, s{sT0}, s{sT1}")
    g.e(f"s_lshr_b32 s{sT0}, s{sXCD}, 1"); g.e(f"s_lshl_b32 s{sT0}, s{sT0}, 2"); g.e(f"s_lshr_b32 s{sT2}, s{sJ}, 3"); g.e(f"s_add_u32 s{sHP}, s{sT0}, s{sT2}")
    g.e(f"s_lshl_b32 s{sT2}, s{sT2}, 1"); g.e(f"s_add_u32 s{sROT}, s{sT1}, s{sT2}"); g.e(f"s_sub_u32 s{sT0}, s{sROT}, 9"); g.e(f"s_cmp_ge_u32 s{sROT}, 9"); g.e(f"s_cselect_b32 s{sROT}, s{sT0}, s{sROT}")
    g.e(f"s_mul_i32 s{sT5}, s{sHP}, 72"); g.e(f"s_and_b32 s{sSH}, s{sT5}, 15"); g.e(f"s_and_b32 s{sT5}, s{sT5}, 0xfffffff0")
    g.e(f"s_and_b32 s{sWQ}, s{sWAVE}, 3")
    g.e(f"s_cmp_ge_u32 s{sWAVE}, 4"); g.e("s_cbranch_scc1 L_V")

def common_setup(g, kind):
    g.e(f"s_lshl_b32 s{sT0}, s{sXCD}, 3"); g.e(f"s_lshr_b32 s{sT1}, s{sJ}, 2"); g.e(f"s_add_u32 s{sTG}, s{sT0}, s{sT1}"); g.e(f"s_and_b32 s{sCG}, s{sJ}, 3")
    g.e(f"s_lshl_b32 s{sT0}, s{sWQ}, 5"); g.e(f"v_add_u32 v12, s{sT0}, v{vN}"); g.e(f"v_lshlrev_b32 v12, 7, v12")
    g.e(f"v_lshrrev_b32 v13, 1, v{vN}"); g.e(f"v_xor_b32 v13, v13, v{vGQ}"); g.e(f"v_lshlrev_b32 v13, 4, v13")
    g.e(f"v_add_u32 v{vXa0}, v12, v13"); g.e(f"v_xor_b32 v{vXa1}, 64, v{vXa0}")
    g.e(f"v_lshrrev_b32 v12, 1, v{vGQ}"); g.e(f"v_lshlrev_b32 v12, 4, v12"); g.e(f"v_and_b32 v13, 1, v{vGQ}"); g.e(f"v_lshlrev_b32 v13, 2, v13")
    g.e(f"v_lshrrev_b32 v14, 2, v{vN}"); g.e(f"v_add3_u32 v{vRP}, v12, v13, v14")
    g.e(f"v_and_b32 v13, 3, v{vLANE}")
    g.e(f"v_mul_u32_u24 v14, 160, v{vRP}"); g.e(f"v_add_u32 v14, s{sSH}, v14")
    g.e(f"v_lshlrev_b32 v15, 3, v13"); g.e(f"v_add_u32 v{vWa}, v14, v15")
    if kind == "K":
        g.e(f"v_cmp_eq_u32 vcc, 1, v13"); g.e(f"v_mov_b32 v15, 64"); g.e(f"v_mov_b32 v12, 112"); g.e(f"v_cndmask_b32 v15, v15, v12, vcc")
        g.e(f"v_add_u32 v{vW2}, v14, v15")
        g.e(f"s_mov_b32 s{sMASK8}, 0x01000100"); g.e(f"s_mov_b32 s{sMASK8+1}, 0x01000100")
    for i in range(4): g.e(f"v_mov_b32 v{vONES+i}, 0x3f803f80")
    g.e(f"s_mov_b32 s{sL2E}, 0x3fb8aa3b")

def phi_load(g, vm):
    g.e(f"s_mul_i32 s{sT0}, s{sHP}, 1296"); g.e(f"v_lshlrev_b32 v12, 2, v{vTID}")
    g.e(f"v_cmp_gt_u32 vcc, 324, v{vTID}"); g.e(f"v_mov_b32 v13, 0x7fffffff"); g.e("s_nop 0"); g.e(f"v_cndmask_b32 v12, v13, v12, vcc")
    g.e(f"buffer_load_dword v74, v12, {sr(sPH,4)}, s{sT0} offen"); return vm.issue()

def early_srds(g):
    srd(g, sX, sKA+0, 2359296); srd(g, sW, sKA+2, 1990656); srd(g, sPH, sKA+4, 20736); srd(g, sWO, sKA+6, 663552)
    srd(g, sWR, sKA+10, 1152); srd(g, sG, sKA+12, 5308416); srd(g, sU, sKA+14, 5308416); srd(g, sDN, sKA+16, 5308416)
    srd(g, sOUT, sKA+18, 2359296); srd(g, sDB, sKA+20, 256); srd(g, sWS, sKA+22, 268435456)

def first_stage(g, vm, kind):
    g.e(f"s_lshl_b32 s{sT2}, s{sROT}, 7")
    if kind == "V":
        g.e(f"s_add_u32 s{sT3}, s{sT2}, 18432")
        for i in range(4):
            g.e(f"s_add_u32 m0, s{sM0X}, {i*1024}"); g.e("s_nop 0"); g.e(f"buffer_load_dwordx4 v{vXo1 if i & 1 else vXo0}, {sr(sX,4)}, s{sT3 if i >= 2 else sT2} offen {NTX} lds"); vm.issue()
    else:
        g.e(f"s_mul_i32 s{sT1}, s{sT2}, 1728")
        for i in range(3):
            g.e(f"s_add_u32 m0, s{sM0W}, {WOFF + 4096*i}")
            if i == 2: g.e(f"s_mov_b64 exec, {sr(sEX,2)}")
            else: g.e("s_nop 0")
            g.e(f"buffer_load_dwordx4 v{vW3[i]}, {sr(sW,4)}, s{sT1} offen {NTW} lds"); vm.issue()
        g.e("s_mov_b64 exec, -1")

def prologue_K(g, vm):
    for t in range(3):
        g.e(f"s_lshl_b32 s{sT0}, s{sWQ}, 6"); g.e(f"s_add_u32 s{sT0}, s{sT0}, {256*t}"); g.e(f"v_add_u32 v12, s{sT0}, v{vLANE}")
        g.e(f"v_mul_u32_u24 v13, 6554, v12"); g.e(f"v_lshrrev_b32 v13, 16, v13")
        g.e(f"v_mul_u32_u24 v14, 10, v13"); g.e(f"v_sub_u32 v14, v12, v14")
        swap23(g, 15, 13, 12); g.e(f"v_mul_u32_u24 v15, 3456, v15")
        g.e(f"v_cmp_lt_u32 vcc, 4, v14"); g.e(f"v_mov_b32 v12, 1152"); g.e(f"v_mov_b32 v13, {2304-80}"); g.e(f"v_cndmask_b32 v12, v12, v13, vcc")
        g.e(f"v_lshlrev_b32 v14, 4, v14"); g.e(f"v_add3_u32 v15, v15, v14, v12"); g.e(f"v_add_u32 v{vW3[t]}, s{sT5}, v15")
    g.e(f"s_lshl_b32 s{sM0W}, s{sWQ}, 10")
    g.e(f"s_cmp_lt_u32 s{sWQ}, 2"); g.e(f"s_cselect_b32 s{sEX}, -1, 0"); g.e(f"s_cselect_b32 s{sEX+1}, -1, 0")
    g.e("s_waitcnt lgkmcnt(0)")
    srd(g, sW, sKA+2, 1990656)
    first_stage(g, vm, "K")
    early_srds(g)
    d = {0: phi_load(g, vm)}
    if TS: g.e("s_memrealtime s[98:99]"); g.e("s_waitcnt lgkmcnt(0)"); g.e("s_mov_b32 s97, s98")
    g.e(f"s_mov_b32 s{sEX3}, s{sEX}"); g.e(f"s_mov_b32 s{sEX3+1}, s{sEX+1}")
    stage_offsets(g)
    g.e(f"v_mov_b32 v80, 0"); g.e(f"v_mov_b32 v81, 0"); g.e(f"v_mov_b32 v82, 0"); g.e(f"v_mov_b32 v83, 0")
    g.e(f"v_lshlrev_b32 v12, 4, v{vTID}"); g.e(f"v_add_u32 v12, {MISC}, v12"); g.e(f"ds_write_b128 v12, v[80:83]")
    common_setup(g, "K")
    dma_stage(g, vm, "K", 1); d[1] = vm.n - 1
    return d

def prologue_V(g, vm):
    g.e(f"s_lshl_b32 s{sT0}, s{sTT}, 7"); g.e(f"s_lshl_b32 s{sT1}, s{sWQ}, 5"); g.e(f"s_add_u32 s{sT0}, s{sT0}, s{sT1}")
    g.e(f"v_lshrrev_b32 v12, 3, v{vLANE}"); g.e(f"v_add_u32 v12, s{sT0}, v12"); g.e(f"v_mul_u32_u24 v12, 1152, v12")
    g.e(f"v_and_b32 v13, 7, v{vLANE}"); g.e(f"v_xor_b32 v13, v13, v{vGQ}"); g.e(f"v_lshlrev_b32 v13, 4, v13")
    g.e(f"v_add_u32 v{vXo0}, v12, v13"); g.e(f"v_xor_b32 v13, 64, v13"); g.e(f"v_add_u32 v12, 9216, v12"); g.e(f"v_add_u32 v{vXo1}, v12, v13")
    g.e(f"s_lshl_b32 s{sM0X}, s{sWQ}, 12")
    g.e("s_waitcnt lgkmcnt(0)")
    srd(g, sX, sKA+0, 2359296)
    first_stage(g, vm, "V")
    early_srds(g)
    d = {0: phi_load(g, vm)}
    if TS: g.e("s_memrealtime s[98:99]"); g.e("s_waitcnt lgkmcnt(0)"); g.e("s_mov_b32 s97, s98")
    stage_offsets(g)
    common_setup(g, "V")
    g.e(f"v_mul_u32_u24 v12, 52, v{vLANE}"); g.e(f"v_lshrrev_b32 v12, 8, v12"); g.e(f"v_mul_u32_u24 v13, 5, v12"); g.e(f"v_sub_u32 v13, v{vLANE}, v13")
    g.e(f"v_lshlrev_b32 v13, 4, v13"); g.e(f"v_add_u32 v13, s{sT5}, v13")
    for p, dst in ((0, vQo), (1, 108), (2, 109)):
        g.e(f"v_add_u32 v14, {11*p}, v12"); swap23(g, 15, 14, 16); g.e(f"v_mul_u32_u24 v15, 3456, v15"); g.e(f"v_add_u32 v{dst}, v15, v13")
    dma_stage(g, vm, "V", 1); d[1] = vm.n - 1
    touch_prep(g, 81)
    touch(g, vm, 0, 0); touch(g, vm, 0, 41)
    return d

def wblk_scatter(g):
    g.e(f"v_cmp_lt_u32 vcc, 161, v{vTID}"); g.e(f"v_mov_b32 v12, 0"); g.e(f"v_mov_b32 v13, 162"); g.e(f"v_cndmask_b32 v12, v12, v13, vcc")
    g.e(f"v_sub_u32 v12, v{vTID}, v12"); g.e(f"v_mov_b32 v14, 0"); g.e(f"v_mov_b32 v13, 18"); g.e(f"v_cndmask_b32 v13, v14, v13, vcc")
    g.e(f"v_mul_u32_u24 v14, 57, v12"); g.e(f"v_lshrrev_b32 v14, 9, v14"); g.e(f"v_mul_u32_u24 v15, 9, v14"); g.e(f"v_sub_u32 v15, v12, v15")
    g.e(f"v_lshl_add_u32 v15, v15, 1, v13"); g.e(f"v_mul_u32_u24 v15, 96, v15")
    g.e(f"v_add_u32 v14, v14, v13"); g.e(f"v_lshl_add_u32 v15, v14, 1, v15"); g.e(f"v_add_u32 v15, {WBLK}, v15")
    g.e(f"v_cmp_gt_u32 vcc, 324, v{vTID}"); g.e(f"s_and_saveexec_b64 {sr(sEX,2)}, vcc")
    L = g.uid("ws"); g.e(f"s_cbranch_execz {L}")
    g.e(f"ds_write_b16 v15, v74"); g.e(f"ds_write_b16_d16_hi v15, v74 offset:96")
    g.lab(L); g.e(f"s_mov_b64 exec, {sr(sEX,2)}")

def a2_read(g):
    for j in range(3):
        g.e(f"v_and_b32 v12, 7, v{vN}"); g.e(f"v_add_u32 v12, {8*j}, v12")
        g.e(f"v_lshrrev_b32 v13, 3, v{vN}"); g.e(f"v_mul_u32_u24 v13, 18, v13"); g.e(f"v_add_u32 v13, v13, v12")
        g.e(f"v_cmp_gt_u32 vcc, 18, v12"); g.e(f"v_mov_b32 v14, 36"); g.e("s_nop 0"); g.e(f"v_cndmask_b32 v13, v14, v13, vcc")
        g.e(f"v_mul_u32_u24 v13, 96, v13"); g.e(f"v_lshl_add_u32 v13, v{vGQ}, 3, v13"); g.e(f"v_add_u32 v13, {WBLK}, v13")
        g.e(f"ds_read_b64 {vr(vA2+6*j,2)}, v13"); g.e(f"ds_read_b64 {vr(vA2+6*j+2,2)}, v13 offset:32"); g.e(f"ds_read_b64 {vr(vA2+6*j+4,2)}, v13 offset:64")

kACC = lambda i, tt: 16 + 8*i + 4*tt
kCS = lambda i: 40 + 4*i
kXB = lambda b, ks, tt: 76 + 16*b + 8*ks + 4*tt
kWB = lambda b, ks, i: 108 + 24*b + 12*ks + 4*i
vXF = lambda u, tt: 112 + 8*u + 4*tt
vACC = lambda i, tt: 16 + 8*i + 4*tt
vSQ = lambda tt: 32 + 4*tt
vCS = lambda i: 40 + 4*i
vWB = lambda b, ks, i: 76 + 16*b + 8*ks + 4*i

def stage_reads(g, kind, st):
    b = st & 1; out = []
    for ks in range(2):
        xa = vXa1 if ks else vXa0
        for tt in range(2):
            d = kXB(b, ks, tt) if kind == "K" else vXF(2*st+ks, tt)
            out.append(f"ds_read_b128 {vr(d,4)}, v{xa} offset:{2048*tt}")
        base = WOFF + ks*5120
        if kind == "K":
            for i in range(3):
                for h in range(2):
                    if i < 2: out.append(f"ds_read_b64_tr_b16 {vr(kWB(b,ks,i)+2*h,2)}, v{vWa} offset:{base + h*1280 + 32*i}")
                    else:     out.append(f"ds_read_b64_tr_b16 {vr(kWB(b,ks,i)+2*h,2)}, v{vW2} offset:{base + h*1280}")
        else:
            for i in range(2):
                for h in range(2):
                    out.append(f"ds_read_b64_tr_b16 {vr(vWB(b,ks,i)+2*h,2)}, v{vWa} offset:{base + h*1280 + 80 + 40*i}")
    return out
def M32(d, a, b, c): return f"v_mfma_f32_16x16x32_bf16 {vr(d,4)}, {vr(a,4)}, {vr(b,4)}, {('0' if c is None else vr(c,4))}"
def stage_mfmas(kind, st):
    b = st & 1; out = []
    for ks in range(2):
        u = 2*st + ks; first = (u == 0)
        if kind == "K":
            for i in range(3):
                for tt in range(2): out.append(M32(kACC(i,tt), kWB(b,ks,i), kXB(b,ks,tt), None if first else kACC(i,tt)))
                out.append(M32(kCS(i), kWB(b,ks,i), vONES, None if first else kCS(i)))
        else:
            for i in range(2):
                for tt in range(2): out.append(M32(vACC(i,tt), vWB(b,ks,i), vXF(u,tt), None if first else vACC(i,tt)))
                out.append(M32(vCS(i), vWB(b,ks,i), vONES, None if first else vCS(i)))
            for tt in range(2): out.append(M32(vSQ(tt), vXF(u,tt), vXF(u,tt), None if first else vSQ(tt)))
    return out
def rebase(g, st_from, st_to, kind):
    d = ((st_to % NSLOT) - (st_from % NSLOT)) * SLOT
    for v in ((vXa0, vXa1, vWa, vW2) if kind == "K" else (vXa0, vXa1, vWa)):
        g.e(f"v_add_u32 v{v}, {d & 0xffffffff}, v{v}")

WQ_SCHED = {7: [(0,0),(0,1),(0,2),(4,0),(4,1),(4,2),(8,0)], 8: [(8,1),(8,2),(12,0),(12,1),(12,2),"x0","x1"]}
def wq_item(g, vm, it):
    vq = lambda p: (vQo, 108, 109)[p]
    if it == "x0":
        Lp, Le = g.uid("q"), g.uid("q")
        g.e(f"s_lshr_b32 s{sT3}, s{sWQ}, 1"); g.e(f"s_add_u32 s{sT3}, s{sT3}, 16"); g.e(f"s_sub_u32 s{sT3}, s{sT3}, s{sWQ}")
        g.e(f"s_bitcmp1_b32 s{sWQ}, 0"); g.e(f"s_cbranch_scc1 {Lp}")
        dma_wq_dyn(g, sT3, 0, vq(0)); g.e(f"s_branch {Le}"); g.lab(Lp); dma_wq_dyn(g, sT3, 1, vq(1)); g.lab(Le); vm.issue()
    elif it == "x1":
        g.e(f"s_and_b32 s{sT3}, s{sWQ}, 1"); g.e(f"s_add_u32 s{sT3}, s{sT3}, 16"); g.e(f"s_sub_u32 s{sT3}, s{sT3}, s{sWQ}")
        dma_wq_dyn(g, sT3, 2, vq(2)); vm.issue()
    else:
        dma_wq_instr(g, vm, it[0], it[1], vq(it[1]))

JUNK = 153600
def emit_poison(g, vm, R):
    for i in range(4): g.e(f"v_mov_b32 v{R+i}, -1")
    g.e(f"v_lshlrev_b32 v12, 4, v{vLANE}")
    g.e(f"s_mul_i32 s{sT0}, s2, {POIS_PER_WG}"); g.e(f"s_lshl_b32 s{sT1}, s{sWQ}, 10"); g.e(f"s_add_u32 s{sT0}, s{sT0}, s{sT1}"); g.e(f"s_mul_i32 s{sT2}, s2, 9216")
    for k in range(3):
        g.e(f"buffer_store_dwordx4 {vr(R,4)}, v12, {sr(sWS,4)}, s{sT0} offen sc1"); vm.issue(); g.e(f"s_add_u32 s{sT0}, s{sT0}, 4096")
    La, Lb = g.uid("p"), g.uid("p")
    g.e(f"s_cmp_lt_u32 s{sWQ}, 2"); g.e(f"s_cbranch_scc0 {La}")
    g.e(f"buffer_store_dwordx4 {vr(R,4)}, v12, {sr(sWS,4)}, s{sT0} offen sc1"); g.e(f"s_branch {Lb}")
    g.lab(La)
    g.e(f"s_sub_u32 s{sT0}, s{sWQ}, 2"); g.e(f"s_lshl_b32 s{sT0}, s{sT0}, 10"); g.e(f"s_add_u32 s{sT0}, s{sT0}, s{sT2}")
    g.e(f"buffer_store_dwordx4 {vr(R,4)}, v12, {sr(sOUT,4)}, s{sT0} offen sc1")
    g.lab(Lb); vm.issue()
    for k in (4, 5):
        g.e(f"s_add_u32 s{sT0}, s{sWQ}, {4*k-14}"); g.e(f"s_min_u32 s{sT0}, s{sT0}, 8"); g.e(f"s_lshl_b32 s{sT0}, s{sT0}, 10"); g.e(f"s_add_u32 s{sT0}, s{sT0}, s{sT2}")
        g.e(f"buffer_store_dwordx4 {vr(R,4)}, v12, {sr(sOUT,4)}, s{sT0} offen sc1"); vm.issue()
    return vm.n - 1

def touch_prep(g, per_wave, glob=False):
    g.e(f"s_lshr_b32 s{sT1}, s{sJ}, 3"); g.e(f"s_lshr_b32 s{sT2}, s{sT1}, 1"); g.e(f"s_lshl_b32 s{sT2}, s{sT2}, 3"); g.e(f"s_and_b32 s{sT0}, s{sJ}, 7"); g.e(f"s_add_u32 s{sT2}, s{sT2}, s{sT0}")
    if glob: g.e(f"s_lshl_b32 s{sT0}, s{sXCD}, 4"); g.e(f"s_add_u32 s{sT2}, s{sT2}, s{sT0}")
    g.e(f"s_mul_i32 s{sT2}, s{sT2}, 324"); g.e(f"s_mul_i32 s{sT0}, s{sWQ}, {per_wave}"); g.e(f"s_add_u32 s{sT2}, s{sT2}, s{sT0}")
    g.e(f"v_add_u32 v15, s{sT2}, v{vLANE}")
    g.e(f"s_and_b32 s{sT1}, s{sT1}, 1"); g.e(f"s_lshr_b32 s{sT0}, s{sXCD}, 2"); g.e(f"s_cmp_eq_u32 s{sT1}, s{sT0}"); g.e(f"s_cselect_b32 s{sT1}, 41, 0")
    g.e(f"v_cmp_gt_u32 vcc, s{sT1}, v{vLANE}"); g.e("v_mov_b32 v12, 0x7fffffff"); g.e("v_mov_b32 v14, 0"); g.e("v_cndmask_b32 v12, v12, v14, vcc")
def touch(g, vm, which, add):
    g.e(f"v_add_u32 v13, {add}, v15"); g.e("v_lshlrev_b32 v13, 7, v13"); g.e("v_or_b32 v13, v13, v12")
    g.e(f"s_mov_b32 m0, {JUNK}"); g.e("s_nop 0")
    g.e(f"buffer_load_dword v13, {sr((sWO, sG, sU, sDN)[which],4)}, 0 offen {NTWO} lds"); vm.issue()

def pass1(g, vm, kind, dma_idx):
    if TS: g.e("s_memrealtime s[98:99]"); g.e("s_waitcnt lgkmcnt(0)"); g.e("s_mov_b32 s101, s98")
    vm.wait(g, dma_idx[0]); g.e("s_waitcnt lgkmcnt(0)"); g.e("s_barrier")
    wblk_scatter(g)
    if TS:
        g.e("s_waitcnt lgkmcnt(0)"); g.e(f"v_mov_b32 v{vTS}, 0"); g.e(f"v_writelane_b32 v{vTS}, s100, 0"); g.e(f"v_writelane_b32 v{vTS}, s96, 50"); g.e(f"v_writelane_b32 v{vTS}, s97, 57"); g.e(f"v_writelane_b32 v{vTS}, s101, 58")
    stamp(g, 1)
    for x in stage_reads(g, kind, 0): g.e(x)
    dma_stage(g, vm, kind, 2); dma_idx[2] = vm.n - 1
    for st in range(9):
        g.e("s_waitcnt lgkmcnt(0)")
        fill = []
        if st < 8:
            vm.wait(g, dma_idx[st+1])
            g.e("s_barrier")
            if STG: stamp(g, 2 + st)
            rebase(g, st, st + 1, kind)
            fill = stage_reads(g, kind, st + 1)
        if kind == "K":
            for ks in range(2):
                for r in range(4): g.e(f"v_cndmask_b32_e64 v{kWB(st&1,ks,2)+r}, v{kWB(st&1,ks,2)+r}, v{vONES}, {sr(sMASK8,2)}")
        extra = []
        if st < 8:
            if st + 3 < 9 and EXP != "nodma" and not (EXP == "noW" and kind == "K") and not (EXP == "noX" and kind == "V"):
                extra += dma_items(vm, kind, st + 3); dma_idx[st+3] = vm.n - 1
            elif st + 3 < 9: dma_idx[st+3] = vm.n - 1
            if kind == "V" and (st + 1) in WQ_SCHED:
                for it in WQ_SCHED[st + 1]:
                    if it == "x0": continue
                    with Cap(g) as c: wq_item(g, vm, it)
                    extra.append(c.lines)
        mm = stage_mfmas(kind, st)
        h = len(mm) // 2
        if PIPE == 0: interleave(g, mm, fill + extra)
        elif PIPE == 1: interleave(g, mm[:h + 2], fill); interleave(g, mm[h + 2:], extra)
        elif PIPE == 2: interleave(g, mm[:h], fill); interleave(g, mm[h:], extra)
        else: interleave(g, mm, extra + fill)
        if st < 8:
            if kind == "V" and (st + 1) in WQ_SCHED and "x0" in WQ_SCHED[st + 1]: wq_item(g, vm, "x0")
            if kind == "V" and (st + 1) in WQ_SCHED: vm.iwq = vm.n - 1
            if st == 0: a2_read(g)
            if kind == "K" and st == 1 and EXP != "nopois": emit_poison(g, vm, 160)
            if st + 1 == 6 and kind == "K":
                L = g.uid("pc"); g.e(f"s_cmp_eq_u32 s{sWAVE}, 0"); g.e(f"s_cbranch_scc0 {L}")
                g.e(f"s_and_b32 s{sT0}, s2, 3"); g.e(f"s_lshl_b32 s{sT0}, s{sT0}, 6"); g.e(f"v_mov_b32 v12, s{sT0}"); g.e("v_mov_b32 v13, 1")
                g.e("s_mov_b64 exec, 1"); g.e(f"buffer_atomic_add v13, v12, {sr(sDB,4)}, 0 offen sc1"); g.e("s_mov_b64 exec, -1")
                g.lab(L)

def dma_wq_dyn(g, sadd, p, vq):
    g.e(f"s_add_u32 s{sT1}, s{sWQ}, s{sadd}")
    g.e(f"s_mul_i32 s{sT2}, s{sT1}, 2560"); g.e(f"s_add_u32 m0, s{sT2}, {WQ + p*880}")
    g.e(f"s_lshl_b32 s{sT0}, s{sROT}, 1"); g.e(f"s_add_u32 s{sT1}, s{sT1}, s{sT0}"); g.e(f"s_sub_u32 s{sT0}, s{sT1}, 18"); g.e(f"s_cmp_ge_u32 s{sT1}, 18"); g.e(f"s_cselect_b32 s{sT1}, s{sT0}, s{sT1}")
    g.e(f"s_mul_i32 s{sT0}, s{sT1}, {32*3456}")
    g.e(f"s_mov_b32 exec_hi, {'0x7fffff' if p < 2 else '0x3ffff'}")
    g.e(f"buffer_load_dwordx4 v{vq}, {sr(sW,4)}, s{sT0} offen {NTW} lds")
    g.e("s_mov_b32 exec_hi, -1")

def build(opts):
    global TS
    import g8 as _g
    TS = _g.TS = opts.get("ts", "0") == "1"
    global NTX, NTW, NTWO, NTC, MOET, PIPE
    PIPE = _g.PIPE = int(opts.get("pipe", "1"))
    global EXP
    EXP = _g.EXP = opts.get("exp", "")
    global STG
    STG = _g.STG = opts.get("stg", "1") == "1"
    NTX = _g.NTX = opts.get("ntx", ""); NTW = _g.NTW = opts.get("ntw", ""); NTWO = _g.NTWO = opts.get("ntwo", ""); NTC = _g.NTC = opts.get("ntc", "nt"); MOET = _g.MOET = opts.get("moet", "0") == "1"
    import copy
    g = G()
    ids(g)
    import p8 as p2
    vmK = VM(); dK = prologue_K(g, vmK)
    p2.k_stream(g, vmK, dK, opts)
    g.lab("L_V")
    vmV = VM(); dV = prologue_V(g, vmV)
    p2.v_stream(g, vmV, dV, opts)
    p2.phase_B2(g, opts)
    p2.phase_CD(g, opts)
    g.lab("L_exit")
    if TS:
        g.e("s_mov_b64 exec, -1"); stamp(g, 63)
        g.e("s_memtime s[96:97]"); g.e("s_waitcnt lgkmcnt(0)"); g.e(f"v_writelane_b32 v{vTS}, s96, 51")
        g.e(f"s_lshl_b32 s{sT0}, s2, 11"); g.e(f"s_lshl_b32 s{sT1}, s{sWAVE}, 8"); g.e(f"s_add_u32 s{sT0}, s{sT0}, s{sT1}"); g.e(f"s_add_u32 s{sT0}, s{sT0}, {TSA}")
        g.e(f"v_lshlrev_b32 v12, 2, v{vLANE}"); g.e(f"buffer_store_dword v{vTS}, v12, {sr(sWS,4)}, s{sT0} offen")
    g.lab("L_exit0")
    g.e("s_endpgm")
    hdr = open("cdna_kernels/" + KNAME[:-7] + ".s.ref").read().split("; Override launch geometry")[0]
    s = hdr + f"; @launch grid=(256,1,1) block=(512,1,1) lds={LDS_TOTAL}\n"
    s += '.amdgcn_target "amdgcn-amd-amdhsa--gfx950"\n.text\n'
    s += f".globl {KNAME}\n.p2align 8\n.type {KNAME},@function\n{KNAME}:\n"
    from hazard import fix
    lines, ins = fix(g.L)
    sys.stderr.write(f"hazard nops inserted: {ins}, lines {len(lines)}\n")
    s += "\n".join(lines) + "\n"
    s += f""".section .rodata,"a"
.p2align 6
.amdhsa_kernel {KNAME}
  .amdhsa_next_free_vgpr 256
  .amdhsa_next_free_sgpr 102
  .amdhsa_accum_offset 256
  .amdhsa_group_segment_fixed_size 0
  .amdhsa_kernarg_size 96
  .amdhsa_user_sgpr_count 2
  .amdhsa_user_sgpr_kernarg_segment_ptr 1
  .amdhsa_system_sgpr_workgroup_id_x 1
.end_amdhsa_kernel
"""
    return s
if __name__ == "__main__":
    opts = dict(a.split("=") for a in sys.argv[2:])
    open(sys.argv[1], "w").write(build(opts))
```
